```python
import torch

def _softmax(x, axis=-1):
    return torch.softmax(x, dim=axis)
def _gelu(x):
    return torch.nn.functional.gelu(x, approximate="tanh")
def _silu(x):
    return torch.nn.functional.silu(x)
def _sigmoid(x):
    return torch.sigmoid(x)
def _layernorm(x, axis=-1, eps=1e-5):
    m = x.mean(dim=axis, keepdim=True)
    v = x.var(dim=axis, keepdim=True, unbiased=False)
    return (x - m) / torch.sqrt(v + eps)
def _scatter_add(tgt, idx, src, axis=0):
    return tgt.clone().index_add_(axis, idx, src)
def _segment_sum(src, seg, n):
    out = torch.zeros((n,) + src.shape[1:], dtype=src.dtype)
    return out.index_add_(0, seg, src)
def _pad(x, pw):
    flat = tuple(v for pair in reversed(pw) for v in pair)
    return torch.nn.functional.pad(x, flat)

kernel_name = 'interleave_layers__grouped_kv_mqa__ssm_conv_h3__prompt'

def setup_inputs():

    _w = (lambda a: (lambda t: t.to(torch.bfloat16) if t.is_floating_point() else t)(torch.as_tensor(a)))
    def _A_setup():
        B, S, D, H = 1, 2048, 512, 32
        Dh = D // H
        return {
            "x": _w((lambda *s: torch.randn(*s, dtype=torch.bfloat16) * 0.05)(B, S, D)),
            "wq": _w((lambda *s: torch.randn(*s, dtype=torch.bfloat16) * 0.05)(D, H * Dh)),
            "wk": _w((lambda *s: torch.randn(*s, dtype=torch.bfloat16) * 0.05)(D, Dh)),
            "wv": _w((lambda *s: torch.randn(*s, dtype=torch.bfloat16) * 0.05)(D, Dh)),
            "wo": _w((lambda *s: torch.randn(*s, dtype=torch.bfloat16) * 0.05)(H * Dh, D)),
        }
    _A_in = _A_setup()

    def _B_setup():
        B, S, D = 1, 2048, 512
        ks = 4
        return {
            "q": _w((lambda *s: torch.randn(*s, dtype=torch.bfloat16) * 0.05)(B, S, D)),
            "k": _w((lambda *s: torch.randn(*s, dtype=torch.bfloat16) * 0.4)(B, S, D)),
            "v": _w((lambda *s: torch.randn(*s, dtype=torch.bfloat16) * 0.4)(B, S, D)),
            "shift_k": _w((lambda *s: torch.randn(*s, dtype=torch.bfloat16) * 0.4)(D, ks) * 0.5),
            "ssm_k": _w((lambda *s: torch.randn(*s, dtype=torch.bfloat16) * 0.8)(D, S) * (1.0 / S ** 0.5)),
            "ssm_D": _w((lambda *s: torch.randn(*s, dtype=torch.bfloat16) * 0.4)(D)),
        }
    _B_in = _B_setup()

    return {
        "A_x": _A_in["x"],
        "A_wq": _A_in["wq"],
        "A_wk": _A_in["wk"],
        "A_wv": _A_in["wv"],
        "A_wo": _A_in["wo"],
        "B_q": _B_in["q"],
        "B_k": _B_in["k"],
        "B_v": _B_in["v"],
        "B_shift_k": _B_in["shift_k"],
        "B_ssm_k": _B_in["ssm_k"],
        "B_ssm_D": _B_in["ssm_D"],
    }

def reference(A_x, A_wq, A_wk, A_wv, A_wo, B_q, B_k, B_v, B_shift_k, B_ssm_k, B_ssm_D):
    def _A_ref(x, wq, wk, wv, wo):
        B, S, D = x.shape
        H = 32
        Dh = D // H
        q = (lambda x, *d: x.permute(*d))((x @ wq).reshape(B, S, H, Dh), 0, 2, 1, 3)
        k = x @ wk
        v = x @ wv
        scores = torch.einsum("bhqd,bkd->bhqk", q, k) * (Dh ** -0.5)
        p = _softmax(scores, axis=-1)
        o = torch.einsum("bhqk,bkd->bhqd", p, v)
        return (lambda x, *d: x.permute(*d))(o, 0, 2, 1, 3).reshape(B, S, H * Dh) @ wo

    def _B_ref(q, k, v, shift_k, ssm_k, ssm_D):
        B, S, D = q.shape
        ks = shift_k.shape[-1]
        k_pad = _pad(k, ((0, 0), (ks - 1, 0), (0, 0)))
        k_shift = torch.zeros_like(k)
        for t in range(ks):
            k_shift = k_shift + k_pad[:, t:t + S, :] * shift_k[:, ks - 1 - t][None, None, :]
        kv = k_shift * v
        L = 2 * S
        kv_pad = _pad(kv, ((0, 0), (0, S), (0, 0)))
        kf_pad = _pad(ssm_k, ((0, 0), (0, S)))
        kv_f = (lambda x, axes=(-2,-1): torch.fft.rfft2(x.float(), dim=axes))(kv_pad[:, None, :, :], axes=(1, 2))
        kf_f = (lambda x, axes=(-2,-1): torch.fft.rfft2(x.float(), dim=axes))(kf_pad[:, None, :], axes=(1, 2))
        kf_f = (lambda x, *d: x.permute(*d))(kf_f, 1, 2, 0)
        y_f = kv_f * kf_f[None, :, :, :]
        y = (lambda x, s, axes=(-2,-1): torch.fft.irfft2(x, s=s, dim=axes).to(torch.bfloat16))(y_f, (1, L), axes=(1, 2))[:, 0, :S, :]
        y = y + kv * ssm_D[None, None, :]
        return q * y

    x = A_x
    x = x + _A_ref(_layernorm(x, axis=-1), A_wq, A_wk, A_wv, A_wo)
    x = x + _B_ref(_layernorm(x, axis=-1), B_k, B_v, B_shift_k, B_ssm_k, B_ssm_D)
    x = x + _A_ref(_layernorm(x, axis=-1), A_wq, A_wk, A_wv, A_wo)
    x = x + _B_ref(_layernorm(x, axis=-1), B_k, B_v, B_shift_k, B_ssm_k, B_ssm_D)
    return x
```

```python
import re

class Asm:
    def __init__(self):
        self.lines = []
        self.vmq = []
        self.lgq = []
        self.uid = 0
    def __call__(self, s):
        for l in s.strip("\n").split("\n"):
            l = l.strip()
            if l: self.lines.append(l)
    def label(self, n): self.lines.append(n + ":")
    def newlabel(self, p="L"):
        self.uid += 1; return f"{p}_{self.uid}"
    def vm(self, s, tag=None): self(s); self.vmq.append(tag)
    def lg(self, s, tag=None): self(s); self.lgq.append(tag)
    def _cnt(self, q, tag):
        idx = max(i for i, t in enumerate(q) if t == tag)
        n = len(q) - 1 - idx
        del q[:idx + 1]
        return n
    def wvm(self, tag=None):
        if tag is None: self.vmq.clear(); n = 0
        else: n = self._cnt(self.vmq, tag)
        assert n <= 63
        self(f"s_waitcnt vmcnt({n})")
    def wlg(self, tag=None):
        if tag is None: self.lgq.clear(); n = 0
        else: n = self._cnt(self.lgq, tag)
        assert n <= 15, n
        self(f"s_waitcnt lgkmcnt({n})")
    def text(self):
        return "".join((l if l.endswith(":") or l.startswith(".") else "    " + l) + "\n" for l in self.lines)

def R(b, n): return f"v[{b}:{b+n-1}]" if n > 1 else f"v{b}"
def S(b, n): return f"s[{b}:{b+n-1}]" if n > 1 else f"s{b}"

_reg = re.compile(r"^-?\|?(?:abs\()?([vsa])(?:(\d+)|\[(\d+):(\d+)\])\)?\|?$")
def regs(op):
    op = op.strip()
    if op == "vcc": return {("s", 106), ("s", 107)}
    if op == "exec": return {("s", 126), ("s", 127)}
    if op == "m0": return {("s", 124)}
    m = _reg.match(op)
    if not m: return set()
    k = m.group(1)
    if m.group(2) is not None: return {(k, int(m.group(2)))}
    return {(k, i) for i in range(int(m.group(3)), int(m.group(4)) + 1)}

TRANS = ("v_exp_", "v_log_", "v_rcp_", "v_rsq_", "v_sqrt_", "v_sin_", "v_cos_")
class I:
    def __init__(self, line):
        self.line = line
        line = line.split(";")[0].strip()
        p = line.split(None, 1)
        self.op = op = p[0]
        rest = p[1] if len(p) > 1 else ""
        ops, d, cur = [], 0, ""
        for ch in rest:
            if ch == "[": d += 1
            if ch == "]": d -= 1
            if ch == "," and d == 0: ops.append(cur); cur = ""
            else: cur += ch
        if cur.strip(): ops.append(cur)
        self.mods = ""
        if ops:
            last = ops[-1].strip().split(None, 1)
            ops[-1] = last[0]
            if len(last) > 1: self.mods = last[1]
        ops = [o.strip() for o in ops]
        self.ops = ops
        rs = [regs(o) for o in ops]
        U = lambda l: set().union(*l) if l else set()
        self.mfma = op.startswith("v_mfma") or op.startswith("v_smfmac")
        self.valu = op.startswith("v_") and not self.mfma
        self.ds = op.startswith("ds_")
        self.vmem = op.startswith("buffer_") or op.startswith("global_")
        self.salu = op.startswith("s_")
        self.trans = op.startswith(TRANS)
        self.dpp = "_dpp" in op
        self.perm = op.startswith("v_permlane")
        self.rdlane = op.startswith("v_readlane") or op.startswith("v_readfirstlane")
        self.w, self.r = set(), set()
        self.passes = 0; self.C = set(); self.AB = set()
        if self.mfma:
            self.passes = 8 if "32x32" in op else (4 if "16x16" in op else 2)
            self.w = rs[0]
            if op.startswith("v_smfmac"): self.C = rs[0]; self.AB = U(rs[1:4])
            else: self.C = rs[3]; self.AB = U(rs[1:3])
            self.r = self.C | self.AB
        elif self.valu:
            if op == "v_nop": pass
            elif op.startswith("v_swap") or self.perm: self.w = U(rs[:2]); self.r = U(rs[:2])
            else:
                self.w = rs[0]; self.r = U(rs[1:])
                if op.startswith(("v_fmac", "v_dot2c", "v_writelane")) or self.dpp: self.r |= rs[0]
                if op.startswith(("v_add_co", "v_sub_co", "v_addc_co")): self.w |= rs[1]
        elif self.ds:
            if op.startswith("ds_read") or "_rtn" in op or "permute" in op: self.w = rs[0]; self.r = U(rs[1:])
            else: self.r = U(rs)
            if "addtid" in op: self.r |= regs("m0")
        elif self.vmem:
            islds = " lds" in (" " + self.mods)
            if "load" in op and not islds: self.w = rs[0]; self.r = U(rs[1:])
            else: self.r = U(rs)
            if islds: self.r |= regs("m0")
            self.islds = islds
            self.wide = "store" in op and ("x3" in op or "x4" in op)
            self.data = rs[0] if op.startswith("buffer_store") else (rs[1] if op.startswith("global_store") else set())
        elif self.salu:
            if op.startswith(("s_cmp", "s_bitcmp", "s_setpc", "s_cbranch", "s_branch", "s_waitcnt", "s_nop", "s_sleep", "s_setprio")): self.r = U(rs)
            elif rs: self.w = rs[0]; self.r = U(rs[1:])
        self.ws = int(ops[0]) + 1 if op == "s_nop" else 1

def need(a, b):
    n = 0
    V = lambda s: {x for x in s if x[0] in "va"}
    Sg = lambda s: {x for x in s if x[0] == "s"}
    if a.valu:
        vw = V(a.w); sw = Sg(a.w)
        if b.mfma and vw & b.r: n = max(n, 2)
        if b.valu and a.trans and not b.trans and vw & b.r: n = max(n, 1)
        if b.valu and (b.dpp or b.perm) and vw & b.r: n = max(n, 2)
        if b.valu and b.rdlane and vw & b.r: n = max(n, 1)
        if b.valu and sw & b.r: n = max(n, 4 if (b.rdlane or b.op.startswith("v_writelane")) and len(b.ops) > 2 and regs(b.ops[2]) & sw else 2)
        if b.vmem and sw & b.r: n = max(n, 5)
    if a.mfma:
        p = a.passes; k = {2: 0, 4: 1, 8: 2}[p]
        if b.mfma:
            if a.w & b.AB: n = max(n, (5, 8, 12)[k])
            if a.w & b.C:
                if a.w == b.C and a.passes == b.passes: n = max(n, (2, 0, 0)[k])
                else: n = max(n, (4, 6, 10)[k])
        elif (b.valu or b.ds or b.vmem) and a.w & (b.r | b.w): n = max(n, (5, 8, 12)[k])
        if b.valu and a.C & b.w: n = max(n, (1, 3, 7)[k])
    if a.salu and ("s", 124) in a.w and (b.ds or b.vmem) and ("s", 124) in b.r: n = max(n, 1)
    if a.vmem and a.wide:
        if b.valu and a.data & b.w: n = max(n, 2)
        elif a.data & b.w: n = max(n, 1)
    return n

def check(lines):
    ins, labels = [], {}
    for l in lines:
        if l.endswith(":"): labels[l[:-1]] = len(ins)
        elif l.startswith(".") or l.startswith(";"): continue
        else: ins.append(I(l))
    calls = {}
    for i, x in enumerate(ins):
        if x.op == "s_call_b64": calls.setdefault(x.ops[0], []).append(i + 1)
    def succ(i):
        x = ins[i]
        if x.op == "s_endpgm": return []
        if x.op == "s_branch": return [labels[x.ops[0]]]
        if x.op == "s_call_b64": return [labels[x.ops[1]]]
        if x.op == "s_setpc_b64": return calls.get(x.ops[0], [])
        o = [i + 1] if i + 1 < len(ins) else []
        if x.op.startswith("s_cbranch"): o.append(labels[x.ops[0]])
        return o
    errs = set()
    for i, a in enumerate(ins):
        if not (a.valu or a.mfma or (a.salu and ("s", 124) in a.w) or (a.vmem and a.wide)): continue
        lim = 12 if a.mfma else 5
        st = [(j, 0) for j in succ(i)]; seen = set()
        while st:
            j, d = st.pop()
            if (j, d) in seen or d >= lim: continue
            seen.add((j, d))
            n = need(a, ins[j])
            if d < n: errs.add((i, j, n, d))
            if ins[j].op == "s_barrier": pass
            for k in succ(j): st.append((k, d + ins[j].ws))
    return [f"hazard need {n} have {d}: [{i}] {ins[i].line}  ->  [{j}] {ins[j].line}" for i, j, n, d in sorted(errs)]
```

```python
import sys
from asmdsl import Asm, R, S, check

NAME = "interleave_layers__grouped_kv_mqa__ssm_conv_h3__prompt"
OPT = dict(stamp=0)
for a_ in sys.argv[2:]:
    k_, v_ = a_.split("="); OPT[k_] = int(v_)

CH, CP, ZERO = 0, 64, 512
QO = 3584
XN = 11776; XNS = 1056
XT = XN + 4 * XNS; XTS = 2112; KVP = XT
PB = 28672; PBW = 2304; PBS = 9216
XNB = PB + 2 * PBS
W = 65536; WSZ = 24576
LDS_BYTES = 163840
C0, C1, UF, YS = 16, 4176, 8272, 11344
FLW = 0x80; FLC = 0x8000; FLK = 0x10000; FLY = 0x18000; FLX = 0x20000
KVG = 0x40000; WKVF = 0x80000; STAMP = 0x100000
KVB = 0x200000; YP = 0x400000; XNG = 0x800000; PX = 0x1000000
WS_BYTES = 268435456
OOB = 0x7ff00000
LOOB = 0x2a000
pX, pWQ, pWK, pWV, pWO, pBK, pBV, pSH, pSK, pSD, pOUT, pWS = 4, 6, 8, 10, 12, 16, 18, 20, 22, 24, 26, 30
sWS, sT0, sT1, sT2 = 32, 36, 40, 44
sWV, sH, sJ, sTAG, sBUD = 48, 49, 50, 51, 52
sA, sB, sC, sD, sE = 53, 54, 55, 56, 57
sM = 58
sLK, sLK2 = 60, 62
sST = 64
sJOB, sPB, sQ, sNEED, sLAY, sGR, sCNT = 66, 67, 68, 69, 72, 73, 74
sTAB = 70
sEX1 = 76
sEXV = 78
sHS, sWP, sCPT, sRPB, sRSL, sCPN, sPOS = 66, 67, 68, 69, 70, 71, 72
sPXW, sPXR, sHALF, sKVO, sMSK = 73, 74, 75, 80, 81
sOWN = 76
sEXK = 78
sSC = 82
sP1, sP2, sP3 = 84, 85, 86
sLYR = 87

a = Asm()
def srd(d, p, n):
    a(f"s_mov_b32 s{d}, s{p}\ns_mov_b32 s{d+1}, s{p+1}\ns_mov_b32 s{d+2}, {n}\ns_mov_b32 s{d+3}, 0x20000")
WSD = S(sWS, 4)
def budget(loop, sleep=0):
    if sleep: a(f"s_sleep {sleep}")
    a(f"s_sub_i32 s{sBUD}, s{sBUD}, 1\ns_cmp_gt_i32 s{sBUD}, 0\ns_cbranch_scc1 {loop}")
vSTA, vSTH = 58, 147
def stamp(i, v):
    if OPT["stamp"]:
        a(f"s_memrealtime s[{sST}:{sST+1}]\ns_waitcnt lgkmcnt(0)\nv_writelane_b32 v{v}, s{sST}, {i}")
        a.lgq.clear()
def flag_store(vtag, soff):
    a("s_mov_b64 exec, 1")
    a.vm(f"buffer_store_dword v{vtag}, off, {WSD}, s{soff} sc1")
    a("s_mov_b64 exec, -1")
def flag_wait(loads, sleep=2):
    L, ok = a.newlabel("fw"), a.newlabel("fwok")
    a.label(L)
    for vd, vo, so in loads:
        a(f"buffer_load_dword v{vd}, v{vo}, {WSD}, s{so} offen sc1")
    a.wvm()
    v0 = loads[0][0]
    a(f"v_xor_b32 v{v0}, s{sTAG}, v{v0}")
    for vd, _, _ in loads[1:]:
        a(f"v_bitop3_b32 v{v0}, v{vd}, s{sTAG}, v{v0} bitop3:0xbe")
    a(f"v_cmp_ne_u32 vcc, 0, v{v0}\ns_cbranch_vccz {ok}")
    budget(L, sleep)
    a.label(ok)

def stats(x, t):
    a(f"""
    v_pk_add_f32 {R(t,2)}, {R(x,2)}, {R(x+2,2)}
    v_pk_mul_f32 {R(t+4,2)}, {R(x,2)}, {R(x,2)}
    v_pk_add_f32 {R(t+2,2)}, {R(x+4,2)}, {R(x+6,2)}
    v_pk_fma_f32 {R(t+4,2)}, {R(x+2,2)}, {R(x+2,2)}, {R(t+4,2)}
    v_pk_add_f32 {R(t,2)}, {R(t,2)}, {R(t+2,2)}
    v_pk_fma_f32 {R(t+4,2)}, {R(x+4,2)}, {R(x+4,2)}, {R(t+4,2)}
    v_add_f32 v{t}, v{t}, v{t+1}
    v_pk_fma_f32 {R(t+4,2)}, {R(x+6,2)}, {R(x+6,2)}, {R(t+4,2)}
    v_add_f32 v{t+1}, v{t+4}, v{t+5}
    s_nop 1
    v_permlane32_swap_b32 v{t}, v{t+1}
    v_add_f32 v{t}, v{t}, v{t+1}
    s_nop 1
    v_add_f32_dpp v{t}, v{t}, v{t} quad_perm:[1,0,3,2] row_mask:0xf bank_mask:0xf
    s_nop 1
    v_add_f32_dpp v{t}, v{t}, v{t} quad_perm:[2,3,0,1] row_mask:0xf bank_mask:0xf
    s_nop 1
    v_add_f32_dpp v{t}, v{t}, v{t} row_half_mirror row_mask:0xf bank_mask:0xf
    s_nop 1
    v_add_f32_dpp v{t}, v{t}, v{t} row_mirror row_mask:0xf bank_mask:0xf
    s_nop 1
    v_add_f32_dpp v{t}, v{t}, v{t} row_bcast:15 row_mask:0xa bank_mask:0xf
    v_mul_f32 v{t}, 0x3b000000, v{t}
    s_nop 0
    v_readlane_b32 s{sM+1}, v{t}, 63
    v_readlane_b32 s{sM}, v{t}, 31
    s_nop 0
    v_mov_b32 v{t}, s{sM+1}
    v_fma_f32 v{t}, -s{sM}, s{sM}, v{t}
    v_max_f32 v{t}, 0, v{t}
    v_add_f32 v{t}, 0x3727c5ac, v{t}
    v_rsq_f32 v{t}, v{t}
    """)
def center(d, x):
    for i in range(0, 8, 2):
        a(f"v_pk_add_f32 {R(d+i,2)}, {R(x+i,2)}, {S(sM,2)} op_sel_hi:[1,0] neg_lo:[0,1] neg_hi:[0,1]")
def unpack(d, srcs):
    for i, s_ in enumerate(srcs):
        a(f"v_lshlrev_b32 v{d+2*i}, 16, v{s_}\nv_and_b32 v{d+2*i+1}, 0xffff0000, v{s_}")
def pack(d, x, n=4):
    for i in range(n): a(f"v_cvt_pk_bf16_f32 v{d+i}, v{x+2*i}, v{x+2*i+1}")
def normalize(x, t, out):
    stats(x, t); center(x, x)
    for i in range(0, 8, 2):
        a(f"v_pk_mul_f32 {R(x+i,2)}, {R(x+i,2)}, {R(t,2)} op_sel_hi:[1,0]")
    pack(out, x)

a(f"""
s_cmp_ge_u32 s2, 256
s_cbranch_scc1 EXIT
s_load_dwordx16 s[4:19], s[0:1], 0
s_load_dwordx8 s[20:27], s[0:1], 64
s_load_dwordx4 s[28:31], s[0:1], 96
s_getpc_b64 s[{sT2}:{sT2+1}]
""")
a.label("PC0")
a(f"""
s_mov_b32 s{sT2+2}, CODE_END-PC0
s_mov_b32 s{sT2+3}, 0x20000
v_lshlrev_b32 v1, 7, v0
""")
a.vm(f"buffer_load_dword v2, v1, {S(sT2,4)}, 0 offen")
a(f"""
v_lshrrev_b32 v1, 6, v0
v_and_b32 v29, 63, v0
v_readfirstlane_b32 s{sWV}, v1
v_lshlrev_b32 v28, 4, v29
s_and_b32 s{sJ}, s2, 3
s_mov_b32 s{sBUD}, 0x100000
s_and_b32 s{sH}, s{sWV}, 3
s_xor_b32 s{sA}, s{sWV}, 4
s_lshl_b32 s{sB}, s2, 3
s_add_u32 s{sA}, s{sA}, s{sB}
s_lshl_b32 s{sE}, s{sA}, 10
s_waitcnt lgkmcnt(0)
s_load_dword s{sTAG}, s[{pWS}:{pWS+1}], 0
""")
srd(sT0, pX, 2097152)
a.vm(f"buffer_load_dwordx4 v[4:7], v28, {S(sT0,4)}, s{sE} offen", "x")
srd(sWS, pWS, WS_BYTES)
a(f"s_cmp_ge_u32 s{sWV}, 4\ns_cbranch_scc1 H_PRE")
q0 = list(a.vmq)

vQ, vIDX, vL16, vTMP, vGO, vOK, vOV = 48, 52, 53, 54, 55, 56, 57
KV = 64
def Kq(i): return KV + 12 * i
def kraw(i): return Kq(i // 4) + i % 4
def vraw(i): return Kq(3 + i // 4) + i % 4
if OPT["stamp"]: a(f"v_mov_b32 v{vSTA}, 0")
stamp(0, vSTA)
a(f"""
v_mov_b32 v8, -1
v_mov_b32 v9, -1
v_mov_b32 v10, -1
v_mov_b32 v11, -1
v_lshrrev_b32 v1, 3, v29
v_lshlrev_b32 v1, 15, v1
v_and_b32 v3, 0x70, v28
s_cmp_eq_u32 s{sWV}, 0
s_cselect_b32 s{sB}, 0, {OOB}
v_add3_u32 v1, v1, v3, s{sB}
s_lshl_b32 s{sA}, s2, 7
s_add_u32 s{sA}, s{sA}, {KVG}
""")
a.vm(f"buffer_store_dwordx4 v[8:11], v1, {WSD}, s{sA} offen sc1", "clear")
srd(sT0, pBK, 2097152); srd(sT1, pBV, 2097152)
a(f"""
v_and_b32 v3, 0xff, v0
v_lshlrev_b32 v1, 2, v3
v_lshlrev_b32 v30, 4, v3
s_lshl_b32 s{sA}, s2, 13
s_sub_u32 s{sB}, s{sA}, 3072
s_cmp_eq_u32 s2, 0
s_cselect_b32 s{sB}, 0, s{sB}
s_cselect_b32 s{sC}, {OOB}, 0
v_add_u32 v3, s{sC}, v1
s_add_u32 s{sC}, s{sA}, 4096
""")
for i in range(3): a.vm(f"buffer_load_dword v{kraw(i)}, v3, {S(sT0,4)}, s{sB} offen offset:{1024*i}")
for i in range(8): a.vm(f"buffer_load_dword v{kraw(3+i)}, v1, {S(sT0,4)}, s{sA if i < 4 else sC} offen offset:{1024*(i%4)}")
for i in range(8): a.vm(f"buffer_load_dword v{vraw(i)}, v1, {S(sT1,4)}, s{sA if i < 4 else sC} offen offset:{1024*(i%4)}")
srd(sT0, pSH, 4096)
a.vm(f"buffer_load_dwordx4 {R(Kq(5),4)}, v30, {S(sT0,4)}, 0 offen", "kv")
a(f"""
v_mov_b64 v[12:13], 0
v_mov_b64 v[14:15], 0
ds_write_b128 v28, v[12:15]
v_mov_b32 v{vIDX}, 0xdddd
v_mov_b32 v{vL16}, v28
v_and_b32 v3, 31, v29
v_lshrrev_b32 v1, 5, v29
s_lshl_b32 s{sA}, s{sH}, 13
s_add_u32 s{sA}, s{sA}, {KVG}
v_lshlrev_b32 v{vOK}, 5, v3
v_lshl_add_u32 v{vOK}, v1, 4, v{vOK}
v_add_u32 v{vOK}, s{sA}, v{vOK}
s_add_u32 s{sA}, s{sA}, 32768
v_lshlrev_b32 v{vOV}, 3, v3
v_lshl_add_u32 v{vOV}, v1, 8, v{vOV}
v_add_u32 v{vOV}, s{sA}, v{vOV}
v_cmp_eq_u32 vcc, 16, v3
v_mov_b32 v16, 0x3f803f80
s_lshl_b64 s[{sEX1}:{sEX1+1}], 1, s{sH}
s_mov_b32 s{sEXV}, 0xffff
s_mov_b32 s{sEXV+1}, 0xffff
v_cndmask_b32 v16, 0, v16, vcc
v_mov_b32 v17, v16
""")
for i in range(16):
    for r in range(4, 12, 2): a(f"v_mov_b64 {R(Kq(i)+r,2)}, v[16:17]")
a(f"s_mul_i32 s{sD}, s{sH}, {XNS}\ns_add_u32 s{sD}, s{sD}, {XNB + 12*XNS}")
a.wvm("x")
qa = list(a.vmq)
a(f"s_call_b64 s[{sLK}:{sLK+1}], LN0\ns_branch A_MAIN")

vL, vH16, vZ, vONE, vQW, vQB, vRA, vRL, vRW, vCP, vOB, vPXR, vXTW, vXTR, vWO, vKR, vKG, vTG, vPXB = range(128, 147)
WO3, YR, XR, T = 148, 180, 188, 196
WKV = T + 28
a.label("H_PRE")
a.vmq = list(q0)
if OPT["stamp"]: a(f"v_mov_b32 v{vSTH}, 0")
stamp(0, vSTH)
srd(sT0, pWK, 16384); srd(sT1, pWV, 16384)
a(f"""
s_mul_i32 s{sWP}, s{sH}, {WSZ}
s_add_u32 s{sWP}, s{sWP}, {W}
s_lshl_b32 s{sA}, s{sH}, 12
s_mov_b32 m0, s{sWP}
s_add_u32 s{sB}, s{sWP}, 4096
""")
for i in range(4): a.vm(f"buffer_load_dwordx4 v28, {S(sT0,4)}, s{sA} offen offset:{1024*i} lds")
a(f"s_mov_b32 m0, s{sB}\ns_nop 0")
for i in range(4): a.vm(f"buffer_load_dwordx4 v28, {S(sT1,4)}, s{sA} offen offset:{1024*i} lds", "wkv")
srd(sT1, pWQ, 524288)
vWQS, vTQ0, vTQ1 = WO3, WO3 + 1, WO3 + 2
a(f"""
v_lshrrev_b32 v1, 2, v29
v_lshlrev_b32 v1, 10, v1
v_and_b32 v3, 3, v29
v_lshrrev_b32 v8, 5, v29
v_lshlrev_b32 v8, 1, v8
v_xor_b32 v3, v3, v8
v_lshl_add_u32 v{vWQS}, v3, 4, v1
s_lshl_b32 s{sP1}, s{sJ}, 8
s_lshl_b32 s{sA}, s{sH}, 6
s_add_u32 s{sP1}, s{sP1}, s{sA}
""")
def wq_slot(p): return 8 + p if p < 16 else (p - 16 if p < 24 else p - 16)
def wq_dma(p0, p1):
    for p in range(p0, p1):
        a(f"s_add_u32 m0, s{sWP}, {1024*wq_slot(p)}")
        a(f"s_add_u32 s{sA}, s{sP1}, {16384*p}")
        a.vm(f"buffer_load_dwordx4 v{vWQS}, {S(sT1,4)}, s{sA} offen lds", f"wq{p}")
wq_dma(0, 16)
a(f"""
v_mov_b32 v{vL}, v29
v_mov_b32 v{vH16}, v28
v_mov_b32 v{vZ}, 0
v_mov_b32 v{vONE}, 1
v_and_b32 v1, 15, v29
v_lshrrev_b32 v3, 4, v29
v_and_b32 v8, 3, v29
v_lshrrev_b32 v9, 2, v1
v_and_b32 v10, 1, v3
v_lshrrev_b32 v11, 1, v3
s_lshl_b32 s{sA}, s{sH}, 7
s_add_u32 s{sA}, s{sA}, {QO}
v_lshlrev_b32 v12, 10, v9
v_lshl_add_u32 v12, v8, 4, v12
v_lshl_add_u32 v13, v11, 9, v12
v_lshl_add_u32 v13, v10, 3, v13
v_add_u32 v{vQW}, s{sA}, v13
v_lshl_add_u32 v13, v10, 9, v12
v_lshl_add_u32 v13, v11, 6, v13
v_add_u32 v{vOB}, {QO}, v13
v_mul_u32_u24 v13, {XNS}, v1
v_lshl_add_u32 v{vQB}, v3, 4, v13
s_lshl_b32 s{sA}, s{sH}, 9
s_add_u32 s{sA}, s{sA}, {PB}
v_lshl_add_u32 v{vRA}, v29, 3, s{sA}
v_lshrrev_b32 v13, 1, v29
v_lshlrev_b32 v14, 2, v13
v_add_u32 v{vRL}, {PB+2048}, v14
s_lshr_b32 s{sA}, s{sH}, 1
s_lshl_b32 s{sA}, s{sA}, 9
s_and_b32 s{sB}, s{sH}, 1
s_lshl_b32 s{sB}, s{sB}, 3
s_add_u32 s{sA}, s{sA}, s{sB}
s_add_u32 s{sA}, s{sA}, {QO}
v_and_b32 v15, 1, v29
v_lshlrev_b32 v14, 4, v13
v_lshl_add_u32 v14, v15, 2, v14
v_add_u32 v{vRW}, s{sA}, v14
v_lshlrev_b32 v{vCP}, 4, v8
s_lshl_b32 s{sA}, s{sH}, 6
v_lshlrev_b32 v14, 8, v13
v_lshl_add_u32 v14, v15, 5, v14
v_add_u32 v{vPXR}, s{sA}, v14
v_lshlrev_b32 v14, 6, v8
v_lshl_add_u32 v{vPXB}, v3, 4, v14
s_lshl_b32 s{sA}, s{sH}, 9
s_add_u32 s{sA}, s{sA}, {XT}
v_mul_u32_u24 v14, {XTS}, v8
v_lshl_add_u32 v14, v3, 4, v14
v_add_u32 v{vXTW}, s{sA}, v14
s_mul_i32 s{sA}, s{sH}, {XTS}
s_add_u32 s{sA}, s{sA}, {XT}
v_lshl_add_u32 v{vXTR}, v29, 5, s{sA}
v_add_u32 v{vWO}, s{sWP}, v28
v_lshlrev_b32 v14, 4, v8
v_lshl_add_u32 v14, v11, 2, v14
v_add_u32 v14, v14, v9
v_lshl_add_u32 v15, v11, 4, v1
v_add_u32 v15, 64, v15
v_cmp_eq_u32 vcc, 1, v10
v_lshlrev_b32 v13, 15, v3
v_lshl_add_u32 v{vKG}, v1, 3, v13
v_cndmask_b32 v14, v14, v15, vcc
v_lshlrev_b32 v14, 4, v14
v_add_u32 v{vKR}, {KVP}, v14
v_bfe_u32 v13, v29, 2, 2
v_lshlrev_b32 v14, 9, v3
v_lshl_add_u32 v14, v13, 6, v14
v_lshl_add_u32 v14, v8, 3, v14
v_lshl_add_u32 v14, v10, 5, v14
v_add_u32 v{vTQ0}, s{sWP}, v14
v_xor_b32 v{vTQ1}, 32, v{vTQ0}
v_lshlrev_b32 v14, 8, v3
v_lshl_add_u32 v14, v1, 3, v14
v_add_u32 v31, s{sWP}, v14
v_mul_u32_u24 v14, {XNS}, v8
v_lshl_add_u32 v14, v3, 4, v14
v_and_b32 v15, 1, v9
v_mul_u32_u24 v15, {XNB + 12*XNS - XN}, v15
s_lshl_b32 s{sA}, s{sH}, 8
s_add_u32 s{sA}, s{sA}, {XN}
v_add3_u32 v{T}, v14, v15, s{sA}
s_mov_b32 s{sHS}, 0
s_mov_b32 s{sSC}, 0x3eb8aa3b
s_mov_b32 s{sMSK}, 0xfff
s_mul_i32 s{sD}, s{sH}, {XNS}
s_add_u32 s{sD}, s{sD}, {XN}
""")
a.wvm("x")
qh = list(a.vmq)
a(f"s_call_b64 s[{sLK}:{sLK+1}], LN0\ns_branch H_MAIN")

a.label("LN0")
unpack(8, [4, 5, 6, 7])
normalize(8, 16, 24)
a(f"""
v_add_u32 v1, s{sD}, v28
s_add_u32 s{sE}, s{sE}, {XNG}
ds_write_b128 v1, v[24:27]
buffer_store_dwordx4 v[24:27], v28, {WSD}, s{sE} offen sc1
s_lshr_b32 s{sA}, s{sWV}, 2
s_xor_b32 s{sA}, s{sA}, 1
s_lshl_b32 s{sA}, s{sA}, 15
s_lshl_b32 s{sB}, s2, 7
s_lshl_b32 s{sC}, s{sH}, 2
s_add_u32 s{sB}, s{sB}, s{sC}
s_add_u32 s{sE}, s{sA}, s{sB}
s_add_u32 s{sE}, s{sE}, {FLX}
s_waitcnt lgkmcnt(0)
s_add_u32 s{sTAG}, s{sTAG}, 1
s_setpc_b64 s[{sLK}:{sLK+1}]
""")
a.label("A_MAIN")

a.vmq = qa + ["xn"]
vTGA = 59
a(f"""
v_mov_b32 v{vTGA}, s{sTAG}
s_lshl_b32 s{sA}, s2, 7
s_add_u32 s{sA}, s{sA}, {FLC}
s_cmp_eq_u32 s{sWV}, 0
s_cbranch_scc0 A_NOC
""")
q_ = list(a.vmq)
a.wvm("clear")
flag_store(vTGA, sA)
a.vmq = q_
a.label("A_NOC")
a("s_barrier")
stamp(1, vSTA)
a.wvm("kv")
a(f"v_mov_b32 v60, v30")
unpack(0, [kraw(i) for i in range(11)])
sk = Kq(5)
for i in range(4):
    if i % 2 == 0: a(f"v_lshlrev_b32 v{22+2*i}, 16, v{sk+i//2}\nv_lshlrev_b32 v{23+2*i}, 16, v{sk+2+i//2}")
    else: a(f"v_and_b32 v{22+2*i}, 0xffff0000, v{sk+i//2}\nv_and_b32 v{23+2*i}, 0xffff0000, v{sk+2+i//2}")
for t in range(8):
    d = R(30 + 2*t, 2)
    a(f"v_pk_mul_f32 {d}, {R(2*(t+3),2)}, v[22:23]")
    for i in range(1, 4): a(f"v_pk_fma_f32 {d}, {R(2*(t+3-i),2)}, {R(22+2*i,2)}, {d}")
    unpack(46, [vraw(t)])
    a(f"v_pk_mul_f32 {d}, {d}, v[46:47]")
for ch in range(2):
    for m in range(4): a(f"v_cvt_pk_bf16_f32 v{Kq(6+ch)+m}, v{30+2*(7-2*m)+ch}, v{30+2*(6-2*m)+ch}")
a(f"s_lshl_b32 s{sA}, s2, 13\ns_add_u32 s{sA}, s{sA}, {KVB}\ns_add_u32 s{sB}, s{sA}, 4096")
a.vm(f"buffer_store_dwordx4 {R(Kq(6),4)}, v60, {WSD}, s{sA} offen sc1")
a.vm(f"buffer_store_dwordx4 {R(Kq(7),4)}, v60, {WSD}, s{sB} offen sc1", "kvb")
a.wvm("xn")
flag_store(vTGA, sE)
stamp(2, vSTA)

def go_wait(val, sleep=0):
    L, ok = a.newlabel("gw"), a.newlabel("gwok")
    a.label(L)
    a(f"ds_read_b32 v{vGO}, v{vL16} offset:{CH}\ns_waitcnt lgkmcnt(0)\nv_readfirstlane_b32 s{sA}, v{vGO}\ns_cmp_ge_u32 s{sA}, {val}\ns_cbranch_scc1 {ok}")
    budget(L, sleep)
    a.label(ok)

go_wait("EV_KV1")
a(f"v_lshlrev_b32 v0, 3, v{vL16}\ns_lshl_b32 s{sB}, s{sH}, 13\ns_add_u32 s{sB}, s{sB}, {FLC}")
flag_wait([(1, 0, sB)])
a(f"s_lshl_b32 s{sB}, s2, 7\ns_lshl_b32 s{sC}, s{sH}, 2\ns_add_u32 s{sB}, s{sB}, s{sC}\ns_add_u32 s{sB}, s{sB}, {FLK}")
flag_store(vTGA, sB)
stamp(3, vSTA)
a(f"""
s_mov_b32 s{sLAY}, 0
s_mov_b32 s{sJOB}, 0
s_mov_b32 s{sTAB}, TAB0L
s_mov_b32 s{sTAB+1}, TAB0H
s_mov_b32 s{sNEED}, EV_Q0
s_setprio 1
""")
def exps(b, i0, i1):
    for i in range(i0, i1): a(f"v_exp_f32 v{b+i}, v{b+i}")
O = 32
def QK(t): a(f"v_mfma_f32_32x32x16_bf16 {R(16*(t&1),16)}, {R(Kq(t%16),4)}, {R(vQ,4)}, 0")
def PV(t, s_): a(f"v_smfmac_f32_32x32x32_bf16 {R(O,16)}, {R(Kq(t%16)+4+4*s_,4)}, {R(16*(t&1)+8*s_,8)}, v{vIDX}")
stubs = []
def verify(g, n):
    L = a.newlabel("ver"); Rt = a.newlabel("ret"); ok = a.newlabel("verok")
    a(f"s_waitcnt vmcnt({n})")
    a.label(L)
    vals = []
    for i in range(4*g, 4*g+4): vals += [Kq(i), Kq(i)+4, Kq(i)+6, Kq(i)+8, Kq(i)+10]
    a(f"v_max_u32 v{vGO}, v{vals[0]}, v{vals[1]}")
    for k in range(2, 20, 2): a(f"v_max3_u32 v{vGO}, v{vGO}, v{vals[k]}, v{vals[k+1]}")
    a(f"v_cmp_eq_u32 vcc, -1, v{vGO}\ns_cbranch_vccnz {Rt}")
    a.label(ok)
    def stub():
        a.label(Rt)
        a(f"s_sub_i32 s{sBUD}, s{sBUD}, 1\ns_cmp_gt_i32 s{sBUD}, 0\ns_cbranch_scc0 {ok}\ns_sleep 2\ns_call_b64 s[{sLK}:{sLK+1}], LG{g}\ns_waitcnt vmcnt(0)\ns_branch {L}")
    stubs.append(stub)
def job_setup():
    a(f"""
    s_and_b32 s{sA}, s{sJOB}, 3
    s_mul_i32 s{sPB}, s{sA}, {PBS}
    s_mul_i32 s{sA}, s{sH}, {PBW}
    s_add_u32 s{sPB}, s{sPB}, s{sA}
    s_add_u32 s{sPB}, s{sPB}, {PB}
    s_add_u32 s{sJOB}, s{sJOB}, 1
    s_and_b32 s{sQ}, s{sJOB}, 7
    s_lshl_b32 s{sQ}, s{sQ}, 10
    s_and_b32 s{sNEED}, s{sTAB}, 0xff
    s_lshr_b64 s[{sTAB}:{sTAB+1}], s[{sTAB}:{sTAB+1}], 8
    """)
def signal():
    a(f"s_mov_b64 exec, s[{sEX1}:{sEX1+1}]\nds_add_u32 v{vL16}, v{vIDX} offset:{CP}\ns_mov_b64 exec, -1")
def body(first):
    for t in range(16):
        b = 16 * (t & 1)
        if t == 0 and not first:
            exps(b, 0, 2); PV(15, 1); exps(b, 2, 5); QK(1)
            a(f"s_mov_b32 m0, s{sPB}")
            exps(b, 5, 12)
            a(f"v_add_u32 v{vTMP}, s{sPB}, v{vL16}")
            a(f"ds_write_b128 v{vTMP}, {R(O,4)}"); exps(b, 12, 13)
            a(f"ds_write_b128 v{vTMP}, {R(O+4,4)} offset:1024"); exps(b, 13, 14)
            a(f"ds_write_addtid_b32 v{O+8} offset:2048"); exps(b, 14, 15)
            for r in range(0, 8, 2): a(f"v_mov_b64 {R(O+r,2)}, 0")
            a(f"v_mov_b32 v{O+8}, 0")
            exps(b, 15, 16)
            continue
        if t == 1 and not first:
            exps(b, 0, 1); PV(0, 0); exps(b, 1, 4); PV(0, 1); exps(b, 4, 7); QK(2)
            signal()
            exps(b, 7, 11); PV(1, 0); exps(b, 11, 16)
            a("s_wakeup")
            continue
        exps(b, 0, 2)
        if t > 0: PV(t - 1, 1)
        exps(b, 2, 5)
        if first and t == 3:
            sk_ = a.newlabel("l2w")
            a(f"s_cmp_eq_u32 s{sLAY}, 0\ns_cbranch_scc1 {sk_}\ns_waitcnt vmcnt(0)")
            a.label(sk_)
            verify(1, 40)
        if first and t == 7:
            sk_ = a.newlabel("l2w")
            a(f"s_cmp_eq_u32 s{sLAY}, 0\ns_cbranch_scc1 {sk_}")
            stamp(9, vSTA)
            go_wait("EV_KVB")
            a(f"s_call_b64 s[{sLK}:{sLK+1}], LG2\ns_call_b64 s[{sLK}:{sLK+1}], LG3")
            a.label(sk_)
            verify(2, 20)
        if first and t == 11: verify(3, 0)
        if t == 15: a("s_waitcnt lgkmcnt(0)")
        QK(t + 1)
        if t == 12: job_setup()
        if t == 13: a(f"ds_read_b32 v{vGO}, v{vL16} offset:{CH}")
        if t == 14:
            st, bk = a.newlabel("gst"), a.newlabel("gbk")
            a(f"s_waitcnt lgkmcnt(0)\nv_readfirstlane_b32 s{sA}, v{vGO}\nv_add_u32 v{vTMP}, s{sQ}, v{vL16}\ns_cmp_ge_u32 s{sA}, s{sNEED}\ns_cbranch_scc0 {st}")
            a.label(bk)
            a(f"ds_read_b128 {R(vQ,4)}, v{vTMP} offset:{QO}")
            def stub(st=st, bk=bk):
                a.label(st); go_wait(f"s{sNEED}"); a(f"s_branch {bk}")
            stubs.append(stub)
        exps(b, 5, 10); PV(t, 0); exps(b, 10, 16)

a.label("A_LAYER")
a(f"s_call_b64 s[{sLK}:{sLK+1}], LG0\ns_call_b64 s[{sLK}:{sLK+1}], LG1")
go_wait(f"s{sNEED}")
a(f"ds_read_b128 {R(vQ,4)}, v{vL16} offset:{QO}")
for r in range(0, 16, 2): a(f"v_mov_b64 {R(O+r,2)}, 0")
verify(0, 20)
a(f"s_waitcnt lgkmcnt(0)")
QK(0)
sk_ = a.newlabel("l1")
a(f"s_cmp_eq_u32 s{sLAY}, 0\ns_cbranch_scc0 {sk_}\ns_call_b64 s[{sLK}:{sLK+1}], LG2\ns_call_b64 s[{sLK}:{sLK+1}], LG3")
stamp(4, vSTA)
a.label(sk_)
a("s_nop 9")
body(True)
a(f"s_mov_b32 s{sCNT}, 7")
a(".p2align 3")
a.label("A_LOOP")
body(False)
a(f"s_sub_u32 s{sCNT}, s{sCNT}, 1\ns_cmp_lg_u32 s{sCNT}, 0\ns_cbranch_scc1 A_LOOP")
PV(15, 1)
a(f"""
s_mov_b32 m0, s{sPB}
v_add_u32 v{vTMP}, s{sPB}, v{vL16}
s_nop 9
ds_write_b128 v{vTMP}, {R(O,4)}
ds_write_b128 v{vTMP}, {R(O+4,4)} offset:1024
ds_write_addtid_b32 v{O+8} offset:2048
""")
signal()
a("s_wakeup")
a(f"s_cmp_eq_u32 s{sLAY}, 0\ns_cbranch_scc0 A_END")
stamp(8, vSTA)
a(f"""
s_mov_b32 s{sLAY}, 131072
s_mov_b32 s{sTAB}, TAB1L
s_mov_b32 s{sTAB+1}, TAB1H
s_mov_b32 s{sNEED}, EV_Q8
s_branch A_LAYER
""")
a.label("A_END")
def dump_stamps(v, l16):
    if OPT["stamp"]:
        a(f"s_lshl_b32 s{sA}, s2, 3\ns_add_u32 s{sA}, s{sA}, s{sWV}\ns_lshl_b32 s{sA}, s{sA}, 8\ns_add_u32 s{sA}, s{sA}, {STAMP}\nv_lshrrev_b32 v0, 2, v{l16}\nbuffer_store_dword v{v}, v0, {WSD}, s{sA} offen")
stamp(15, vSTA)
dump_stamps(vSTA, vL16)
a.label("EXIT")
a("s_endpgm")
for g in range(4):
    a.label(f"LG{g}")
    a(f"s_add_u32 s{sGR}, s{sLAY}, {(g>>1)*65536 + (g&1)*4096}")
    for i in range(4): a(f"buffer_load_dwordx4 {R(Kq(4*g+i),4)}, v{vOK}, {WSD}, s{sGR} offen offset:{1024*i} sc1")
    a(f"s_mov_b64 exec, s[{sEXV}:{sEXV+1}]")
    for i in range(4):
        for s_ in range(2):
            for u in range(2):
                a(f"buffer_load_dwordx2 {R(Kq(4*g+i)+4+4*s_+2*u,2)}, v{vOV}, {WSD}, s{sGR} offen offset:{1024*i+512*s_+128*u} sc1")
    a(f"s_mov_b64 exec, -1\ns_setpc_b64 s[{sLK}:{sLK+1}]")
for s_ in stubs: s_()

hs_count = [0]
EV = {}
def hsync_code(tmp):
    L, ok = a.newlabel("hs"), a.newlabel("hsok")
    a(f"""
    s_add_u32 s{sHS}, s{sHS}, 4
    s_mov_b64 exec, 1
    ds_add_rtn_u32 v{tmp}, v{vZ}, v{vONE} offset:{CH}
    s_mov_b64 exec, -1
    s_waitcnt lgkmcnt(0)
    v_readfirstlane_b32 s{sA}, v{tmp}
    s_add_u32 s{sA}, s{sA}, 1
    s_cmp_ge_u32 s{sA}, s{sHS}
    s_cbranch_scc1 {ok}
    """)
    a.label(L)
    a(f"ds_read_b32 v{tmp}, v{vZ} offset:{CH}\ns_waitcnt lgkmcnt(0)\nv_readfirstlane_b32 s{sA}, v{tmp}\ns_cmp_ge_u32 s{sA}, s{sHS}\ns_cbranch_scc1 {ok}")
    budget(L)
    a.label(ok)
    a.lgq.clear()
SUB_HS = {"HSYNC": 1, "KVPROJ": 1, "QPASS": 1, "RED": 0, "OPASS": 0, "XNSTAGE": 0, "PXWAIT": 0, "ROWOPS": 1, "ROWOPS_L1": 3}
def call(n, ev=None, label=None):
    a(f"s_call_b64 s[{sLK}:{sLK+1}], {label or n}")
    hs_count[0] += SUB_HS[n]
    a.lgq.clear()
    if ev: EV[ev] = 4 * hs_count[0]
def ret(): a(f"s_setpc_b64 s[{sLK}:{sLK+1}]")
HT = T + 27

a.label("H_MAIN")
a.vmq = qh + ["xn"]
a(f"v_mov_b32 v{vTG}, s{sTAG}")
a.wvm("wkv")
for m in range(2):
    for s_ in range(4):
        for u in range(2):
            a.lg(f"ds_read_b64_tr_b16 {R(WKV+16*m+4*s_+2*u,2)}, v31 offset:{4096*m+1024*s_+128*u}")
        if m == 1 and s_ == 1: a.wlg()
a.wlg()
a("s_barrier")
stamp(1, vSTH)
wq_dma(16, 24)
a(f"s_lshl_b32 s{sKVO}, s2, 7\ns_add_u32 s{sKVO}, s{sKVO}, {KVG}\ns_mov_b64 s[{sEXK}:{sEXK+1}], -1")
call("KVPROJ", "KV1")
stamp(2, vSTH)
sk_ = a.newlabel("st")
a(f"s_cmp_eq_u32 s2, 0\ns_cbranch_scc0 {sk_}\ns_lshl_b32 s{sA}, s{sH}, 13\ns_add_u32 s{sA}, s{sA}, {WKVF}\ns_add_u32 s{sB}, s{sA}, 4096")
for i in range(8): a(f"buffer_store_dwordx4 {R(WKV+4*i,4)}, v{vH16}, {WSD}, s{sA if i < 4 else sB} offen offset:{1024*(i%4)} sc1")
a.label(sk_)
def wq_tr(s0, s1):
    for s_ in range(s0, s1):
        for hh in range(2):
            for u in range(2):
                a.lg(f"ds_read_b64_tr_b16 {R((hh*16+s_)*4+2*u,2)}, v{vTQ1 if hh else vTQ0} offset:{1024*wq_slot(2*s_)+256*u}")
        if (s_ - s0) % 3 == 2: a.wlg()
a.wvm("wq7"); wq_tr(0, 4); a.wlg()
wq_dma(24, 32)
a.wvm("xn"); flag_store(vTG, sE)
wq_tr(4, 8)
a.wvm("wq23"); wq_tr(8, 12)
a.wvm("wq31"); wq_tr(12, 16)
a.wlg()
stamp(3, vSTH)
vPB_, vPW_ = T + 40, T + 41
a(f"""
v_and_b32 v{T}, 12, v{vL}
v_mul_u32_u24 v{T}, {XNS}, v{T}
v_sub_u32 v{vPB_}, v{vQB}, v{T}
v_add_u32 v{vPB_}, {XN}, v{vPB_}
v_mov_b32 v{vPW_}, v{vQW}
""")
call("QPASS", "Q0")
stamp(4, vSTH)
KR = WO3
a(f"""
s_and_b32 s{sA}, s2, 7
s_lshl_b32 s{sA}, s{sA}, 5
s_lshr_b32 s{sB}, s2, 3
s_add_u32 s{sPOS}, s{sA}, s{sB}
s_lshl_b32 s{sA}, s{sPOS}, 1
s_lshr_b32 s{sB}, s{sH}, 1
s_add_u32 s{sA}, s{sA}, s{sB}
s_lshl_b32 s{sC}, s{sA}, 1
s_lshl_b32 s{sA}, s{sA}, 12
s_add_u32 s{sT0}, s{pSK}, s{sA}
s_addc_u32 s{sT0+1}, s{pSK+1}, 0
s_mov_b32 s{sT0+2}, 4096
s_mov_b32 s{sT0+3}, 0x20000
v_add_u32 v{KR+21}, -4, v{vH16}
""")
srd(sT1, pSD, 1024)
for i in range(4): a.vm(f"buffer_load_dwordx4 {R(KR+4*i,4)}, v{vH16}, {S(sT0,4)}, 0 offen offset:{1024*i}")
a.vm(f"buffer_load_dword v{KR+16}, v{KR+21}, {S(sT0,4)}, 0 offen")
for i in range(1, 4): a.vm(f"buffer_load_dword v{KR+16+i}, v{vH16}, {S(sT0,4)}, 0 offen offset:{1024*i-4}")
a.vm(f"buffer_load_ushort v{KR+20}, off, {S(sT1,4)}, s{sC}")
def xnstage(layer, half, dst):
    a(f"s_mov_b32 s{sP1}, {FLX + (layer*2+half)*0x8000}\ns_mov_b32 s{sP2}, {XNG + layer*0x200000 + half*4096}\ns_mov_b32 s{sP3}, {dst + (1-half)*4*XNS}")
    call("XNSTAGE"); a.vmq.clear()
xnstage(0, 0, XN); xnstage(0, 1, XNB)
sk_ = a.newlabel("st")
a(f"s_cmp_eq_u32 s2, 0\ns_cbranch_scc0 {sk_}\ns_lshl_b32 s{sA}, s{sH}, 2\ns_add_u32 s{sA}, s{sA}, {FLW}")
flag_store(vTG, sA); a.vmq.clear()
a.label(sk_)
call("HSYNC")
def qpass(half, src, ev):
    a(f"v_add_u32 v{vPB_}, {src}, v{vQB}\nv_add_u32 v{vPW_}, {4096*half}, v{vQW}")
    call("QPASS", ev)
qpass(0, XN, "Q1")
stamp(5, vSTH)
qpass(1, XNB, "Q4")
stamp(6, vSTH)

a(f"v_mov_b64 {R(T,2)}, 0\nv_mov_b64 {R(T+2,2)}, 0")
for i in range(4):
    a(f"ds_write_b128 v{vWO}, {R(KR+4*i,4)} offset:{C0+1024*i}")
    for m in range(4):
        a(f"v_alignbit_b32 v{T+4+4*i+m}, v{KR+4*i+m}, v{KR+4*i+m-1 if m else KR+16+i}, 16")
    a(f"ds_write_b128 v{vWO}, {R(T+4+4*i,4)} offset:{C1+1024*i}")
a(f"""
v_lshrrev_b32 v{T+20}, 5, v{vL}
v_lshl_add_u32 v{T+21}, v{T+20}, 10, v{vWO}
ds_write_b128 v{T+21}, {R(T,4)} offset:{UF}
v_lshrrev_b32 v{T+21}, 1, v{vL}
v_mul_u32_u24 v{T+21}, {2080-32}, v{T+21}
v_add_u32 v{T+21}, v{T+21}, v{vWO}
s_mov_b64 exec, 0x3ff
ds_write_b128 v{T+21}, {R(T,4)} offset:{YS}
s_mov_b64 exec, 1
ds_write_b128 v{vWO}, {R(T,4)}
ds_write_b128 v{vWO}, {R(T,4)} offset:{C1-16}
s_mov_b64 exec, -1
v_lshlrev_b32 v{T+22}, 9, v{vL}
v_lshlrev_b32 v{T+23}, 15, v{vL}
s_and_b32 s{sC}, s{sH}, 1
s_lshl_b32 s{sB}, s{sC}, 8
s_lshr_b32 s{sD}, s{sPOS}, 6
s_lshl_b32 s{sD}, s{sD}, 2
s_add_u32 s{sB}, s{sB}, s{sD}
s_add_u32 s{sP1}, s{sB}, {FLK}
s_add_u32 s{sP2}, s{sP1}, 128
""")
flag_wait([(T+24, T+22, sP1), (T+25, T+22, sP2)])
a(f"""
s_lshl_b32 s{sC}, s{sC}, 14
s_lshr_b32 s{sB}, s{sH}, 1
s_lshl_b32 s{sB}, s{sB}, 12
s_add_u32 s{sC}, s{sC}, s{sB}
s_lshl_b32 s{sB}, s{sPOS}, 4
s_add_u32 s{sC}, s{sC}, s{sB}
s_add_u32 s{sP1}, s{sC}, {KVB}
s_add_u32 s{sP2}, s{sP1}, 8192
""")
a.vm(f"buffer_load_dwordx4 {R(T+4,4)}, v{T+23}, {WSD}, s{sP1} offen sc1")
a.vm(f"buffer_load_dwordx4 {R(T+8,4)}, v{T+23}, {WSD}, s{sP2} offen sc1")
CA, CB, ACC = 212, 228, 148
vA0, vA1, vB0 = 252, 253, 254
AD = CA + 12
a(f"""
v_and_b32 v{T+12}, 1, v{vL}
v_xor_b32 v{T+13}, 1, v{T+12}
v_lshlrev_b32 v{T+14}, 4, v{T+13}
v_lshlrev_b32 v{T+14}, v{T+14}, v{KR+20}
v_lshrrev_b32 v{T+15}, 1, v{vL}
""")
for m in range(4):
    a(f"v_cmp_eq_u32 vcc, {3-m}, v{T+15}\ns_nop 1\nv_cndmask_b32 v{AD+m}, 0, v{T+14}, vcc")
a(f"""
v_mul_u32_u24 v{T+13}, {C1-C0}, v{T+13}
v_lshl_add_u32 v{T+13}, v{T+15}, 2, v{T+13}
s_add_u32 s{sA}, s{sWP}, {C0-12}
v_add_u32 v{vA0}, s{sA}, v{T+13}
v_add_u32 v{vA1}, 2048, v{vA0}
v_and_b32 v{T+13}, 31, v{vL}
v_sub_u32 v{T+13}, v{T+13}, v{T+20}
s_add_u32 s{sA}, s{sWP}, {UF+32}
v_lshl_add_u32 v{vB0}, v{T+13}, 4, s{sA}
""")
a.wvm()
a(f"ds_write_b128 v{vWO}, {R(T+4,4)} offset:{UF+512}\nds_write_b128 v{vWO}, {R(T+8,4)} offset:{UF+1536+512}")
a.wlg()
stamp(7, vSTH)
def mm32(d, A, B, c): a(f"v_mfma_f32_32x32x16_bf16 {R(d,16)}, {R(A,4)}, {R(B,4)}, {c}")
def rdA(E, hi):
    d = CA + 8 * (E & 1) + 4 * hi
    for u in range(2):
        a.lg(f"ds_read2_b32 {R(d+2*u,2)}, v{vA1 if hi else vA0} offset0:{(E&7)*32+2*u} offset1:{(E&7)*32+2*u+1}", ("A", E, hi))
def bslot(E, ff): return CB + 8 * ((2 * E + ff) % 3)
def rdB(E, ff):
    for T_ in range(2):
        a.lg(f"ds_read_b128 {R(bslot(E,ff)+4*T_,4)}, v{vB0} offset:{(30-2*E)*16+512*T_+1536*ff}", ("B", E, ff))
rdB(0, 0); rdB(0, 1); rdA(0, 0); rdA(0, 1)
a.wlg(("B", 0, 1))
for ff in range(2):
    for T_ in range(2): mm32(ACC + 32*ff + 16*T_, AD, bslot(0, ff) + 4*T_, 0)
for E in range(16):
    A0 = CA + 8 * (E & 1)
    for ff in range(2):
        if E == 7 and ff == 0: a(f"v_add_u32 v{vA0}, 1024, v{vA0}\nv_add_u32 v{vA1}, 1024, v{vA1}")
        if E < 15:
            if ff == 0: rdB(E + 1, 0)
            rdA(E + 1, ff)
        tags = [t_ for t_ in (("A", E, 1), ("B", E, ff)) if t_ in a.lgq]
        if tags: a.wlg(max(tags, key=lambda t_: a.lgq.index(t_)))
        b = bslot(E, ff); c0 = ACC + 32*ff
        mm32(c0 + 16, A0, b + 4, R(c0 + 16, 16)); mm32(c0, A0, b, R(c0, 16)); mm32(c0 + 16, A0 + 4, b, R(c0 + 16, 16))
        if E < 15 and ff == 0: rdB(E + 1, 1)
stamp(8, vSTH)
a(f"""
v_and_b32 v{CA}, 31, v{vL}
v_lshrrev_b32 v{CA+1}, 5, v{vL}
v_lshlrev_b32 v{CA+2}, 5, v{CA}
v_lshl_add_u32 v{CA+2}, v{CA+1}, 4, v{CA+2}
v_add_u32 v{CA+2}, s{sWP}, v{CA+2}
s_and_b32 s{sA}, s{sH}, 1
s_lshl_b32 s{sA}, s{sA}, 1
v_add_u32 v{CA+1}, s{sA}, v{CA+1}
s_lshr_b32 s{sA}, s{sH}, 1
s_lshl_b32 s{sA}, s{sA}, 5
s_add_u32 s{sA}, s{sA}, {W+YS}
v_lshl_add_u32 v{CA}, v{CA}, 6, s{sA}
""")
for T_ in range(2):
    f0, f1 = ACC + 16*T_, ACC + 32 + 16*T_
    a(f"ds_write_b128 v{CA+2}, {R(f0,4)} offset:{YS+32+1024*T_}")
    for q in range(1, 4):
        for u in (0, 2): a(f"v_pk_add_f32 {R(f0+4*q+u,2)}, {R(f0+4*q+u,2)}, {R(f1+4*q-4+u,2)}")
        a(f"ds_write_b128 v{CA+2}, {R(f0+4*q,4)} offset:{YS+32+1024*T_+2080*q}")
    a(f"ds_write_b128 v{CA+2}, {R(f1+12,4)} offset:{YS+32+1024*T_+2080*4}")
c1, c2, c3, zz = CA + 3, CA + 4, CA + 5, CA + 6
a(f"""
v_mul_u32_u24 v{CA+7}, 2080, v{CA+1}
v_add_u32 v{CA+7}, v{CA+7}, v{CA}
v_add_u32 v{c1}, 32, v{CA+7}
v_mov_b32 v{zz}, {W+YS}
v_add_u32 v{c2}, {WSZ-2*2080+32}, v{CA+7}
v_add_u32 v{c3}, {WSZ+2*2080}, v{CA+7}
v_add_u32 v{CA+8}, {4*2080}, v{CA}
v_cmp_eq_u32 vcc, 3, v{CA+1}
s_nop 1
v_cndmask_b32 v{c3}, v{c3}, v{zz}, vcc
v_cmp_eq_u32 vcc, 1, v{CA+1}
s_nop 1
v_cndmask_b32 v{c2}, v{c2}, v{zz}, vcc
v_cmp_eq_u32 vcc, 0, v{CA+1}
s_nop 1
v_cndmask_b32 v{c2}, v{c2}, v{CA+8}, vcc
""")
call("HSYNC")
for ch in range(2):
    for k_, c_ in enumerate((c1, c2, c3)):
        for g in range(2):
            a.lg(f"ds_read_b128 {R(ACC+24*ch+8*k_+4*g,4)}, v{c_} offset:{2*WSZ*ch+16*g}", ch)
a(f"s_lshl_b32 s{sA}, s{sPOS}, 13\ns_lshl_b32 s{sB}, s{sH}, 10\ns_add_u32 s{sA}, s{sA}, s{sB}\ns_add_u32 s{sP1}, s{sA}, {YP}\ns_add_u32 s{sP2}, s{sP1}, 4096")
for ch in range(2):
    a.wlg(ch)
    b = ACC + 24*ch
    for k_ in (1, 2):
        for u in range(0, 8, 2): a(f"v_pk_add_f32 {R(b+u,2)}, {R(b+u,2)}, {R(b+8*k_+u,2)}")
for e_ in range(8):
    r_ = 4*(e_ & 1) + (e_ >> 1)
    a(f"v_cvt_pk_bf16_f32 v{T+e_}, v{ACC+r_}, v{ACC+24+r_}")
a.vm(f"buffer_store_dwordx4 {R(T,4)}, v{vH16}, {WSD}, s{sP1} offen sc1")
a.vm(f"buffer_store_dwordx4 {R(T+4,4)}, v{vH16}, {WSD}, s{sP2} offen sc1", "y")
call("HSYNC")
stamp(9, vSTH)

srd(sT1, pWO, 524288)
vS0, vS1, vTA = T + 8, T + 9, T + 10
a(f"""
v_lshrrev_b32 v{T+20}, 4, v{vL}
v_bfe_u32 v{T+21}, v{vL}, 1, 3
v_lshlrev_b32 v{T+22}, 1, v{T+20}
v_xor_b32 v{T+21}, v{T+21}, v{T+22}
v_lshlrev_b32 v{T+22}, 10, v{T+20}
v_lshl_add_u32 v{T+22}, v{T+21}, 5, v{T+22}
v_and_b32 v{T+21}, 1, v{vL}
v_lshl_add_u32 v{vS0}, v{T+21}, 4, v{T+22}
v_xor_b32 v{vS1}, 32, v{vS0}
s_lshl_b32 s{sP3}, s{sJ}, 17
s_lshl_b32 s{sA}, s{sH}, 8
s_add_u32 s{sP3}, s{sP3}, s{sA}
""")
def wo_dma(s_, area):
    for bi in range(8):
        a(f"s_add_u32 m0, s{sWP}, {8192*area+1024*bi}\ns_add_u32 s{sA}, s{sP3}, {(32*s_+4*bi)*1024}")
        a.vm(f"buffer_load_dwordx4 v{vS1 if (bi>>1)&1 else vS0}, {S(sT1,4)}, s{sA} offen lds", f"wo{s_}")
wo_dma(3, 0); wo_dma(1, 1); wo_dma(2, 2)
a(f"""
v_bfe_u32 v{T+21}, v{vL}, 2, 2
v_and_b32 v{T+22}, 1, v{T+20}
v_lshl_add_u32 v{T+22}, v{T+21}, 1, v{T+22}
v_lshlrev_b32 v{T+23}, 11, v{T+20}
v_lshl_add_u32 v{T+23}, v{T+21}, 8, v{T+23}
v_lshl_add_u32 v{T+23}, v{T+22}, 5, v{T+23}
v_and_b32 v{T+21}, 3, v{vL}
v_lshl_add_u32 v{T+23}, v{T+21}, 3, v{T+23}
v_add_u32 v{vTA}, s{sWP}, v{T+23}
""")
for mt in range(1, 8): a(f"v_xor_b32 v{vTA+mt}, {32*mt}, v{vTA}")
a(f"s_lshl_b32 s{sA}, s{sPOS}, 7\ns_lshl_b32 s{sB}, s{sH}, 2\ns_add_u32 s{sA}, s{sA}, s{sB}\ns_add_u32 s{sB}, s{sA}, {FLY}")
a.wvm("y"); flag_store(vTG, sB)
def wo_tr(area, dst):
    for mt in range(8):
        for u in range(2): a.lg(f"ds_read_b64_tr_b16 {R(dst+4*mt+2*u,2)}, v{vTA+mt} offset:{8192*area+1024*u}")
        if mt == 3: a.wlg()
    a.wlg()
def wo_wr(area, src):
    for mt in range(8): a.lg(f"ds_write_b128 v{vWO}, {R(src+4*mt,4)} offset:{8192*area+1024*mt}")
    a.wlg()
a.wvm("wo3"); wo_tr(0, WO3)
wo_dma(0, 0)
srd(sT0, pX, 2097152)
a(f"s_lshl_b32 s{sA}, s2, 3\ns_add_u32 s{sA}, s{sA}, s{sH}\ns_lshl_b32 s{sA}, s{sA}, 10\ns_add_u32 s{sB}, s{sA}, 4096")
a.vm(f"buffer_load_dwordx4 {R(XR,4)}, v{vH16}, {S(sT0,4)}, s{sA} offen")
a.vm(f"buffer_load_dwordx4 {R(XR+4,4)}, v{vH16}, {S(sT0,4)}, s{sB} offen")
for s_ in (1, 2, 0):
    a.wvm(f"wo{s_}"); wo_tr(s_, WKV); wo_wr(s_, WKV)
srd(sT0, pOUT, 2097152)
stamp(10, vSTH)

a(f"s_mov_b32 s{sCPN}, 0")
def red(n):
    for _ in range(n): call("RED")
vOBp, vXTp, vPXp = T + 56, T + 57, T + 58
def opass(rnd, partner, own):
    half = rnd & 1
    m = 0xf000f000 if half else 0x000f000f
    a(f"s_mov_b32 s{sOWN}, {m:#x}\ns_mov_b32 s{sOWN+1}, {m:#x}\nv_add_u32 v{vOBp}, {4096*half}, v{vOB}\nv_mov_b32 v{T+8}, {ZERO}\nv_mov_b32 v{T+9}, {OOB}\nv_mov_b32 v{vXTp}, {LOOB}")
    if not own: a(f"v_cndmask_b32 v{vOBp}, v{vOBp}, v{T+8}, s[{sOWN}:{sOWN+1}]")
    else: a(f"v_cndmask_b32 v{vXTp}, v{vXTp}, v{vXTW}, s[{sOWN}:{sOWN+1}]")
    if not partner: a(f"v_cndmask_b32 v{vOBp}, v{T+8}, v{vOBp}, s[{sOWN}:{sOWN+1}]")
    else:
        a(f"""
        v_bfe_u32 v{T+10}, v{vL}, 2, 2
        s_add_u32 s{sA}, s{sJ}, {half}
        v_add_u32 v{T+10}, s{sA}, v{T+10}
        v_and_b32 v{T+10}, 3, v{T+10}
        v_lshl_add_u32 v{T+10}, v{T+10}, 15, v{vPXB}
        v_cndmask_b32 v{vPXp}, v{T+10}, v{T+9}, s[{sOWN}:{sOWN+1}]
        s_and_b32 s{sA}, s2, 0xfc
        s_lshl_b32 s{sA}, s{sA}, 15
        s_lshl_b32 s{sB}, s{sJ}, 13
        s_add_u32 s{sA}, s{sA}, s{sB}
        s_lshl_b32 s{sB}, s{sH}, 11
        s_add_u32 s{sA}, s{sA}, s{sB}
        s_add_u32 s{sPXW}, s{sA}, {PX + rnd*0x800000}
        """)
    a(f"s_mov_b32 s{sP1}, {int(partner)}")
def pxwait(rnd):
    a(f"s_lshl_b32 s{sPXR}, s2, 15\ns_add_u32 s{sPXR}, s{sPXR}, {PX + rnd*0x800000}")
    call("PXWAIT")
def rowops(rnd, ev=None):
    a(f"s_mov_b32 s{sHALF}, {rnd & 1}\ns_mov_b32 s{sLYR}, {rnd >> 1}")
    call("ROWOPS" if rnd >> 1 else "ROWOPS_L1", ev, "ROWOPS")

red(4); opass(0, True, True); call("HSYNC", "R3"); stamp(11, vSTH); call("OPASS")
stamp(12, vSTH)
a(f"""
v_lshlrev_b32 v{T+8}, 9, v{vL}
s_lshr_b32 s{sA}, s{sPOS}, 6
s_lshl_b32 s{sA}, s{sA}, 2
s_add_u32 s{sP1}, s{sA}, {FLY}
s_add_u32 s{sP2}, s{sP1}, 128
s_add_u32 s{sP3}, s{sP1}, 256
s_add_u32 s{sB}, s{sP1}, 384
s_lshl_b32 s{sC}, s{sH}, 2
s_add_u32 s{sC}, s{sC}, {FLW}
""")
flag_wait([(T+9, T+8, sP1), (T+10, T+8, sP2), (T+11, T+8, sP3), (T+12, T+8, sB), (T+13, vZ, sC)])
a(f"""
v_lshlrev_b32 v{T+8}, 15, v{vL}
s_lshl_b32 s{sA}, s{sPOS}, 4
s_lshr_b32 s{sB}, s{sH}, 1
s_lshl_b32 s{sB}, s{sB}, 12
s_add_u32 s{sA}, s{sA}, s{sB}
s_and_b32 s{sB}, s{sH}, 1
s_lshl_b32 s{sB}, s{sB}, 3
s_add_u32 s{sA}, s{sA}, s{sB}
s_add_u32 s{sA}, s{sA}, {YP}
""")
for u in range(4):
    a(f"buffer_load_dwordx2 {R(YR+2*u,2)}, v{T+8}, {WSD}, s{sA} offen sc1")
    if u < 3: a(f"s_add_u32 s{sA}, s{sA}, 8192")
stamp(13, vSTH)
pxwait(0); stamp(14, vSTH); rowops(0); stamp(15, vSTH)
red(3); opass(1, True, False); call("HSYNC", "R6"); stamp(16, vSTH); call("OPASS")
xnstage(1, 0, XN); call("HSYNC"); qpass(0, XN, "Q8"); stamp(17, vSTH)
pxwait(1); stamp(18, vSTH); opass(1, False, True); red(1); call("HSYNC"); stamp(19, vSTH); call("OPASS"); stamp(20, vSTH)
rowops(1); stamp(21, vSTH)
call("HSYNC", "KVB"); xnstage(1, 1, XN); call("HSYNC"); qpass(1, XN, "Q12"); stamp(22, vSTH)
red(4); opass(2, True, True); call("HSYNC", "R11"); call("OPASS"); pxwait(2); rowops(2); stamp(23, vSTH)
red(3); opass(3, True, False); call("HSYNC"); stamp(24, vSTH); call("OPASS")
pxwait(3); stamp(25, vSTH); opass(3, False, True); red(1); call("HSYNC"); stamp(26, vSTH); call("OPASS"); stamp(27, vSTH)
rowops(3)
stamp(28, vSTH)
dump_stamps(vSTH, vH16)
a(f"s_or_b32 s{sA}, s2, s{sH}\ns_cmp_eq_u32 s{sA}, 0\ns_cbranch_scc0 H_END")
flag_store(vTG, sA)
a.label("H_END")
a("s_endpgm")

a.label("HSYNC"); hsync_code(HT); ret()

def mm16(d, A, B, c): a(f"v_mfma_f32_16x16x32_bf16 {R(d,4)}, {R(A,4)}, {R(B,4)}, {c}")

a.label("RED")
r0 = T + 8
a(f"""
s_and_b32 s{sRPB}, s{sCPN}, 3
s_mul_i32 s{sRPB}, s{sRPB}, {PBS}
s_and_b32 s{sRSL}, s{sCPN}, 7
s_lshl_b32 s{sRSL}, s{sRSL}, 10
s_add_u32 s{sCPN}, s{sCPN}, 1
s_mul_i32 s{sCPT}, s{sCPN}, 0xdddd
v_add_u32 v{r0+12}, s{sRPB}, v{vRA}
v_add_u32 v{r0+13}, s{sRPB}, v{vRL}
v_add_u32 v{r0+14}, s{sRSL}, v{vRW}
""")
a.label("RED_W")
a(f"ds_read_b32 v{r0}, v{vCP} offset:{CP}\ns_waitcnt lgkmcnt(0)\nv_cmp_gt_u32 vcc, s{sCPT}, v{r0}\ns_cbranch_vccz RED_GO")
budget("RED_W", 4)
a.label("RED_GO")
a("s_setprio 2")
a(f"ds_read2st64_b32 {R(r0+8,2)}, v{r0+13} offset0:0 offset1:9\nds_read2st64_b32 {R(r0+10,2)}, v{r0+13} offset0:18 offset1:27")
for w in range(4): a(f"ds_read_b64 {R(r0+2*w,2)}, v{r0+12} offset:{PBW*w}")
a(f"""
s_waitcnt lgkmcnt(4)
v_pk_add_f32 {R(r0+8,2)}, {R(r0+8,2)}, {R(r0+10,2)}
v_add_f32 v{r0+8}, v{r0+8}, v{r0+9}
v_rcp_f32 v{r0+10}, v{r0+8}
s_waitcnt lgkmcnt(0)
v_pk_add_f32 {R(r0,2)}, {R(r0,2)}, {R(r0+2,2)}
v_pk_add_f32 {R(r0+4,2)}, {R(r0+4,2)}, {R(r0+6,2)}
v_pk_add_f32 {R(r0,2)}, {R(r0,2)}, {R(r0+4,2)}
v_pk_mul_f32 {R(r0,2)}, {R(r0,2)}, {R(r0+10,2)} op_sel_hi:[1,0]
v_cvt_pk_bf16_f32 v{r0}, v{r0}, v{r0+1}
ds_write_b32 v{r0+14}, v{r0}
s_setprio 0
""")
ret()

a.label("QPASS")
qa_ = T + 32
for s_ in range(8): a.lg(f"ds_read_b128 {R(T+4*s_,4)}, v{vPB_} offset:{64*s_}", s_)
for s_ in range(16):
    a.wlg(s_)
    for hh in range(2): mm16(qa_ + 4*hh, (hh*16 + s_)*4, T + 4*(s_ % 8), R(qa_ + 4*hh, 4) if s_ else 0)
    if s_ < 8: a.lg(f"ds_read_b128 {R(T+4*s_,4)}, v{vPB_} offset:{64*(s_+8)}", s_ + 8)
a("s_setprio 2\ns_nop 5")
for i in range(0, 8, 2): a(f"v_pk_mul_f32 {R(qa_+i,2)}, {R(qa_+i,2)}, {S(sSC,2)} op_sel_hi:[1,0]")
pack(T, qa_)
a(f"ds_write_b64 v{vPW_}, {R(T,2)}\nds_write_b64 v{vPW_}, {R(T+2,2)} offset:64")
hsync_code(HT)
a("s_setprio 0")
ret()

a.label("XNSTAGE")
a(f"""
v_and_b32 v{T+8}, 3, v{vL}
v_max_u32 v{T+8}, 1, v{T+8}
v_add_u32 v{T+8}, s{sJ}, v{T+8}
v_and_b32 v{T+8}, 3, v{T+8}
v_lshlrev_b32 v{T+8}, 7, v{T+8}
s_and_b32 s{sB}, s2, 0xfc
s_lshl_b32 s{sA}, s{sB}, 7
s_add_u32 s{sP1}, s{sP1}, s{sA}
s_lshl_b32 s{sA}, s{sH}, 2
s_add_u32 s{sP1}, s{sP1}, s{sA}
s_lshl_b32 s{sB}, s{sB}, 13
s_add_u32 s{sP2}, s{sP2}, s{sB}
s_lshl_b32 s{sA}, s{sH}, 10
s_add_u32 s{sP2}, s{sP2}, s{sA}
s_mul_i32 s{sA}, s{sH}, {XNS}
s_add_u32 s{sP3}, s{sP3}, s{sA}
""")
flag_wait([(T+9, T+8, sP1)])
for ip in range(1, 4):
    a(f"s_add_u32 s{sA}, s{sJ}, {ip}\ns_and_b32 s{sA}, s{sA}, 3\ns_lshl_b32 s{sA}, s{sA}, 13\ns_add_u32 s{sA}, s{sA}, s{sP2}")
    a.vm(f"buffer_load_dwordx4 {R(T+8+4*ip,4)}, v{vH16}, {WSD}, s{sA} offen sc1", ip)
a(f"v_add_u32 v{T+8}, s{sP3}, v{vH16}")
for ip in range(1, 4):
    a.wvm(ip); a(f"ds_write_b128 v{T+8}, {R(T+8+4*ip,4)} offset:{4*XNS*(ip-1)}")
ret()

a.label("OPASS")
oB, oA, oC = T + 8, T + 24, T + 48
a(f"s_cmp_eq_u32 s{sP1}, 0")
def rdoA(mt):
    for s_ in range(3): a.lg(f"ds_read_b128 {R(oA+12*(mt&1)+4*s_,4)}, v{vWO} offset:{8192*s_+1024*mt}", mt)
for s_ in (3, 0, 1, 2): a.lg(f"ds_read_b128 {R(oB+4*s_,4)}, v{vOBp} offset:{128*s_}")
rdoA(0); rdoA(1)
def oepi(mt):
    c_ = oC + 4*(mt & 1); sk = a.newlabel("oe")
    a.lg(f"ds_write_b128 v{vXTp}, {R(c_,4)} offset:{64*mt}")
    a(f"s_cbranch_scc1 {sk}\nv_bfi_b32 v{c_}, s{sMSK}, v{vTG}, v{c_}\nbuffer_store_dwordx4 {R(c_,4)}, v{vPXp}, {WSD}, s{sPXW} offen offset:{256*mt} sc1")
    a.label(sk)
for mt in range(8):
    c_ = oC + 4*(mt & 1)
    a.wlg(mt)
    mm16(c_, WO3 + 4*mt, oB + 12, 0)
    for s_ in range(3): mm16(c_, oA + 12*(mt & 1) + 4*s_, oB + 4*s_, R(c_, 4))
    if mt < 6: rdoA(mt + 2)
    else: a("s_nop 2")
    if mt: oepi(mt - 1)
a("s_nop 5")
oepi(7)
ret()

a.label("PXWAIT")
for ip in range(1, 4):
    a(f"s_add_u32 s{sA}, s{sJ}, {ip}\ns_and_b32 s{sA}, s{sA}, 3\ns_lshl_b32 s{sA}, s{sA}, 13\ns_add_u32 s{sP1+ip-1}, s{sA}, s{sPXR}")
a.label("PX_W")
for ip in range(3):
    for u in range(2): a(f"buffer_load_dwordx4 {R(T+8+8*ip+4*u,4)}, v{vPXR}, {WSD}, s{sP1+ip} offen offset:{16*u} sc1")
a(f"s_waitcnt vmcnt(0)\ns_setprio 2\nv_xor_b32 v{T}, v{vTG}, v{T+8}")
for k_ in range(1, 6): a(f"v_bitop3_b32 v{T}, v{T+8+4*k_}, v{vTG}, v{T} bitop3:0xbe")
a(f"v_and_b32 v{T}, s{sMSK}, v{T}\nv_cmp_ne_u32 vcc, 0, v{T}\ns_cbranch_vccz PX_GO\ns_setprio 0")
budget("PX_W", 4)
a.label("PX_GO")
unpack(T, [XR, XR+1, XR+2, XR+3])
for ip in range(3):
    for u in range(0, 8, 2): a(f"v_pk_add_f32 {R(T+u,2)}, {R(T+u,2)}, {R(T+8+8*ip+u,2)}")
a("s_setprio 0")
ret()

a.label("ROWOPS")
a(f"s_setprio 2\ns_cmp_eq_u32 s{sLYR}, 0\ns_cbranch_scc0 RO_1\ns_lshl_b32 s{sA}, s{sH}, 13\ns_add_u32 s{sA}, s{sA}, {WKVF}\ns_add_u32 s{sB}, s{sA}, 4096")
for i in range(8): a(f"buffer_load_dwordx4 {R(WKV+4*i,4)}, v{vH16}, {WSD}, s{sA if i < 4 else sB} offen offset:{1024*(i%4)} sc1")
a.label("RO_1")
hsync_code(HT)
a(f"ds_read_b128 {R(T+8,4)}, v{vXTR}\nds_read_b128 {R(T+12,4)}, v{vXTR} offset:16")
a(f"""
s_lshl_b32 s{sE}, s2, 1
s_add_u32 s{sE}, s{sE}, s{sHALF}
s_lshl_b32 s{sE}, s{sE}, 2
s_add_u32 s{sE}, s{sE}, s{sH}
s_lshl_b32 s{sE}, s{sE}, 10
s_waitcnt lgkmcnt(0)
""")
for u in range(0, 8, 2): a(f"v_pk_add_f32 {R(T+u,2)}, {R(T+u,2)}, {R(T+8+u,2)}")
stats(T, T + 16)
center(T + 8, T)
for u in range(4):
    unpack(T + 18, [YR + 2*u])
    a(f"v_pk_mul_f32 {R(T+8+2*u,2)}, {R(T+8+2*u,2)}, {R(T+18,2)}")
for u in range(0, 8, 2): a(f"v_pk_fma_f32 {R(T+u,2)}, {R(T+8+u,2)}, {R(T+16,2)}, {R(T+u,2)} op_sel_hi:[1,0,1]")
pack(XR, T)
a(f"s_cmp_eq_u32 s{sLYR}, 0\ns_cbranch_scc1 RO_2")
a(f"buffer_store_dwordx4 {R(XR,4)}, v{vH16}, {S(sT0,4)}, s{sE} offen\ns_nop 1\ns_branch RO_3")
a.label("RO_2")
normalize(T, T + 16, T + 8)
a(f"""
s_mul_i32 s{sA}, s{sHALF}, {12*XNS}
s_mul_i32 s{sB}, s{sH}, {XNS}
s_add_u32 s{sB}, s{sB}, s{sA}
v_add_u32 v{T+12}, s{sB}, v{vH16}
ds_write_b128 v{T+12}, {R(T+8,4)} offset:{XN}
s_add_u32 s{sE}, s{sE}, {XNG + 0x200000}
buffer_store_dwordx4 {R(T+8,4)}, v{vH16}, {WSD}, s{sE} offen sc1
s_lshl_b32 s{sB}, s{sH}, 8
s_add_u32 s{sA}, s{sA}, s{sB}
s_add_u32 s{sA}, s{sA}, {XN}
v_and_b32 v{T}, 12, v{vL}
v_mul_u32_u24 v{T}, {XNS}, v{T}
v_sub_u32 v{T}, v{vQB}, v{T}
v_add_u32 v{T}, s{sA}, v{T}
s_lshl_b32 s{sKVO}, s2, 7
s_lshl_b32 s{sB}, s{sHALF}, 16
s_add_u32 s{sKVO}, s{sKVO}, s{sB}
s_add_u32 s{sKVO}, s{sKVO}, {KVG + 131072}
s_mov_b32 s{sEXK+1}, 0
""")
hsync_code(HT)
a(f"s_mov_b64 s[{sLK2}:{sLK2+1}], s[{sLK}:{sLK+1}]\ns_waitcnt vmcnt(1)\ns_call_b64 s[{sLK}:{sLK+1}], KVPROJ\ns_mov_b64 s[{sLK}:{sLK+1}], s[{sLK2}:{sLK2+1}]")
a(f"""
s_lshl_b32 s{sA}, s{sHALF}, 15
s_lshl_b32 s{sB}, s2, 7
s_add_u32 s{sA}, s{sA}, s{sB}
s_lshl_b32 s{sB}, s{sH}, 2
s_add_u32 s{sA}, s{sA}, s{sB}
s_add_u32 s{sA}, s{sA}, {FLX + 2*0x8000}
s_waitcnt vmcnt(0)
""")
flag_store(vTG, sA)
a.label("RO_3")
for u in range(4): a(f"v_swap_b32 v{YR+2*u}, v{YR+2*u+1}\nv_swap_b32 v{XR+u}, v{XR+4+u}")
a("s_setprio 0")
ret()

a.label("KVPROJ")
for s_ in range(4): a.lg(f"ds_read_b128 {R(T+4+4*s_,4)}, v{T} offset:{64*s_}", s_)
a(f"s_lshl_b32 s{sA}, s{sH}, 11\ns_add_u32 s{sA}, s{sA}, {KVP}\nv_add_u32 v{T+1}, s{sA}, v{vH16}")
for s_ in range(4):
    a.wlg(s_)
    mm16(T + 20, WKV + 4*s_, T + 4 + 4*s_, R(T + 20, 4) if s_ else 0)
    mm16(T + 24, T + 4 + 4*s_, WKV + 16 + 4*s_, R(T + 24, 4) if s_ else 0)
a(f"s_nop 6\nds_write_b128 v{T+1}, {R(T+20,4)}\nds_write_b128 v{T+1}, {R(T+24,4)} offset:1024")
hsync_code(T)
a(f"s_cmp_eq_u32 s{sH}, 0\ns_cbranch_scc0 KV_END")
for w in range(4): a(f"ds_read_b128 {R(T+4+4*w,4)}, v{vKR} offset:{2048*w}")
a(f"""
s_waitcnt lgkmcnt(2)
v_pk_add_f32 {R(T+4,2)}, {R(T+4,2)}, {R(T+8,2)}
v_pk_add_f32 {R(T+6,2)}, {R(T+6,2)}, {R(T+10,2)}
s_waitcnt lgkmcnt(0)
v_pk_add_f32 {R(T+12,2)}, {R(T+12,2)}, {R(T+16,2)}
v_pk_add_f32 {R(T+14,2)}, {R(T+14,2)}, {R(T+18,2)}
v_pk_add_f32 {R(T+4,2)}, {R(T+4,2)}, {R(T+12,2)}
v_pk_add_f32 {R(T+6,2)}, {R(T+6,2)}, {R(T+14,2)}
v_cvt_pk_bf16_f32 v{T+4}, v{T+4}, v{T+5}
v_cvt_pk_bf16_f32 v{T+5}, v{T+6}, v{T+7}
v_min_u32 v{T+4}, -2, v{T+4}
s_mov_b64 exec, s[{sEXK}:{sEXK+1}]
buffer_store_dwordx2 {R(T+4,2)}, v{vKG}, {WSD}, s{sKVO} offen sc1
s_mov_b64 exec, -1
""")
a.label("KV_END")
ret()
a.label("CODE_END")

need0 = [EV["Q1"], EV["Q1"], EV["Q4"], EV["Q4"], EV["R3"], EV["R3"], EV["R3"], EV["R3"]]
need1 = [EV["R6"], EV["R6"], EV["R6"], EV["Q12"], EV["R11"], EV["R11"], EV["R11"], EV["R11"]]
def tab(l):
    v = sum(x << (8*i) for i, x in enumerate(l)); assert max(l) < 256
    return v & 0xffffffff, v >> 32
sets = {"EV_" + k: v for k, v in EV.items()}
sets["TAB0L"], sets["TAB0H"] = tab(need0); sets["TAB1L"], sets["TAB1H"] = tab(need1)
errs = check(a.lines)
for e_ in errs: print(e_, file=sys.stderr)
ref = open(f"cdna_kernels/{NAME}.s.ref").read()
hdr = ref[:ref.index("; Override launch geometry")]
out = hdr + f"; @launch grid=(256,1,1) block=(512,1,1) lds={LDS_BYTES}\n"
out += '.amdgcn_target "amdgcn-amd-amdhsa--gfx950"\n'
out += "".join(f".set {k}, {v:#x}\n" for k, v in sets.items())
out += f".text\n.globl {NAME}_kernel\n.p2align 8\n.type {NAME}_kernel,@function\n{NAME}_kernel:\n"
out += a.text()
out += f""".section .rodata,"a"
.p2align 6
.amdhsa_kernel {NAME}_kernel
  .amdhsa_next_free_vgpr 256
  .amdhsa_next_free_sgpr 102
  .amdhsa_accum_offset 256
  .amdhsa_group_segment_fixed_size 0
  .amdhsa_kernarg_size 112
  .amdhsa_user_sgpr_count 2
  .amdhsa_user_sgpr_kernarg_segment_ptr 1
  .amdhsa_system_sgpr_workgroup_id_x 1
  .amdhsa_float_denorm_mode_32 3
.end_amdhsa_kernel
"""
open(sys.argv[1], "w").write(out)
print("events", EV, "hazards", len(errs), file=sys.stderr)
```

```python
import sys
from asmdsl import Asm, R, S, check

NAME = "interleave_layers__grouped_kv_mqa__ssm_conv_h3__prompt"
OPT = dict(stamp=0, probe=0, pq=2, po=2, pc=0)
for a_ in sys.argv[2:]:
    k_, v_ = a_.split("="); OPT[k_] = int(v_)

CH, CP, ZERO = 0, 64, 512
QO = 3584
XN = 11776; XNS = 1056
XT = XN + 4 * XNS; XTS = 2112; KVP = XT
PB = 28672; PBW = 2304; PBS = 9216
XNB = PB + 2 * PBS
W = 65536; WSZ = 24576
LDS_BYTES = 163840
C0, C1, UF, YS = 16, 4176, 8272, 11344
FLW = 0x80; FLC = 0x8000; FLK = 0x10000; FLY = 0x18000; FLX = 0x20000
KVG = 0x40000; WKVF = 0x80000; STAMP = 0x100000
KVB = 0x200000; YP = 0x400000; XNG = 0x800000; PX = 0x1000000
WS_BYTES = 268435456
OOB = 0x7ff00000
LOOB = 0x2a000
pX, pWQ, pWK, pWV, pWO, pBK, pBV, pSH, pSK, pSD, pOUT, pWS = 4, 6, 8, 10, 12, 16, 18, 20, 22, 24, 26, 30
sWS, sT0, sT1, sT2 = 32, 36, 40, 44
sWV, sH, sJ, sTAG, sBUD = 48, 49, 50, 51, 52
sA, sB, sC, sD, sE = 53, 54, 55, 56, 57
sM = 58
sLK, sLK2 = 60, 62
sST = 64
sJOB, sPB, sQ, sNEED, sLAY, sGR, sCNT = 66, 67, 68, 69, 72, 73, 74
sTAB = 70
sEX1 = 76
sEXV = 78
sHS, sWP, sCPT, sRPB, sRSL, sCPN, sPOS = 66, 67, 68, 69, 70, 71, 72
sPXW, sPXR, sHALF, sKVO, sMSK = 73, 74, 75, 80, 81
sOWN = 76
sEXK = 78
sSC = 82
sP1, sP2, sP3 = 84, 85, 86
sLYR = 87

a = Asm()
def srd(d, p, n):
    a(f"s_mov_b32 s{d}, s{p}\ns_mov_b32 s{d+1}, s{p+1}\ns_mov_b32 s{d+2}, {n}\ns_mov_b32 s{d+3}, 0x20000")
WSD = S(sWS, 4)
def budget(loop, sleep=0):
    if sleep: a(f"s_sleep {sleep}")
    a(f"s_sub_i32 s{sBUD}, s{sBUD}, 1\ns_cmp_gt_i32 s{sBUD}, 0\ns_cbranch_scc1 {loop}")
vSTA, vSTH = 58, 147
def stamp(i, v):
    if OPT["stamp"]:
        a(f"s_memrealtime s[{sST}:{sST+1}]\ns_waitcnt lgkmcnt(0)\nv_writelane_b32 v{v}, s{sST}, {i}")
        a.lgq.clear()
def flag_store(vtag, soff):
    a("s_mov_b64 exec, 1")
    a.vm(f"buffer_store_dword v{vtag}, off, {WSD}, s{soff} sc1")
    a("s_mov_b64 exec, -1")
def flag_wait(loads, sleep=2):
    L, ok = a.newlabel("fw"), a.newlabel("fwok")
    a.label(L)
    for vd, vo, so in loads:
        a(f"buffer_load_dword v{vd}, v{vo}, {WSD}, s{so} offen sc1")
    a.wvm()
    v0 = loads[0][0]
    a(f"v_xor_b32 v{v0}, s{sTAG}, v{v0}")
    for vd, _, _ in loads[1:]:
        a(f"v_bitop3_b32 v{v0}, v{vd}, s{sTAG}, v{v0} bitop3:0xbe")
    a(f"v_cmp_ne_u32 vcc, 0, v{v0}\ns_cbranch_vccz {ok}")
    budget(L, sleep)
    a.label(ok)

def stats(x, t):
    a(f"""
    v_pk_add_f32 {R(t,2)}, {R(x,2)}, {R(x+2,2)}
    v_pk_mul_f32 {R(t+4,2)}, {R(x,2)}, {R(x,2)}
    v_pk_add_f32 {R(t+2,2)}, {R(x+4,2)}, {R(x+6,2)}
    v_pk_fma_f32 {R(t+4,2)}, {R(x+2,2)}, {R(x+2,2)}, {R(t+4,2)}
    v_pk_add_f32 {R(t,2)}, {R(t,2)}, {R(t+2,2)}
    v_pk_fma_f32 {R(t+4,2)}, {R(x+4,2)}, {R(x+4,2)}, {R(t+4,2)}
    v_add_f32 v{t}, v{t}, v{t+1}
    v_pk_fma_f32 {R(t+4,2)}, {R(x+6,2)}, {R(x+6,2)}, {R(t+4,2)}
    v_add_f32 v{t+1}, v{t+4}, v{t+5}
    s_nop 1
    v_permlane32_swap_b32 v{t}, v{t+1}
    v_add_f32 v{t}, v{t}, v{t+1}
    s_nop 1
    v_add_f32_dpp v{t}, v{t}, v{t} quad_perm:[1,0,3,2] row_mask:0xf bank_mask:0xf
    s_nop 1
    v_add_f32_dpp v{t}, v{t}, v{t} quad_perm:[2,3,0,1] row_mask:0xf bank_mask:0xf
    s_nop 1
    v_add_f32_dpp v{t}, v{t}, v{t} row_half_mirror row_mask:0xf bank_mask:0xf
    s_nop 1
    v_add_f32_dpp v{t}, v{t}, v{t} row_mirror row_mask:0xf bank_mask:0xf
    s_nop 1
    v_add_f32_dpp v{t}, v{t}, v{t} row_bcast:15 row_mask:0xa bank_mask:0xf
    v_mul_f32 v{t}, 0x3b000000, v{t}
    s_nop 0
    v_readlane_b32 s{sM+1}, v{t}, 63
    v_readlane_b32 s{sM}, v{t}, 31
    s_nop 0
    v_mov_b32 v{t}, s{sM+1}
    v_fma_f32 v{t}, -s{sM}, s{sM}, v{t}
    v_max_f32 v{t}, 0, v{t}
    v_add_f32 v{t}, 0x3727c5ac, v{t}
    v_rsq_f32 v{t}, v{t}
    """)
def center(d, x):
    for i in range(0, 8, 2):
        a(f"v_pk_add_f32 {R(d+i,2)}, {R(x+i,2)}, {S(sM,2)} op_sel_hi:[1,0] neg_lo:[0,1] neg_hi:[0,1]")
def unpack(d, srcs):
    for i, s_ in enumerate(srcs):
        a(f"v_lshlrev_b32 v{d+2*i}, 16, v{s_}\nv_and_b32 v{d+2*i+1}, 0xffff0000, v{s_}")
def pack(d, x, n=4):
    for i in range(n): a(f"v_cvt_pk_bf16_f32 v{d+i}, v{x+2*i}, v{x+2*i+1}")
def normalize(x, t, out):
    stats(x, t); center(x, x)
    for i in range(0, 8, 2):
        a(f"v_pk_mul_f32 {R(x+i,2)}, {R(x+i,2)}, {R(t,2)} op_sel_hi:[1,0]")
    pack(out, x)

a(f"""
s_cmp_ge_u32 s2, 256
s_cbranch_scc1 EXIT
s_load_dwordx16 s[4:19], s[0:1], 0
s_load_dwordx8 s[20:27], s[0:1], 64
s_load_dwordx4 s[28:31], s[0:1], 96
{"s_memrealtime s[%d:%d]" % (sST, sST+1) if OPT["stamp"] else ""}
s_getpc_b64 s[{sT2}:{sT2+1}]
""")
a.label("PC0")
a(f"""
s_mov_b32 s{sT2+2}, CODE_END-PC0
s_mov_b32 s{sT2+3}, 0x20000
v_lshlrev_b32 v1, 7, v0
""")
a.vm(f"buffer_load_dword v2, v1, {S(sT2,4)}, 0 offen")
a(f"""
v_lshrrev_b32 v1, 6, v0
v_and_b32 v29, 63, v0
v_readfirstlane_b32 s{sWV}, v1
v_lshlrev_b32 v28, 4, v29
s_and_b32 s{sJ}, s2, 3
s_mov_b32 s{sBUD}, 0x100000
s_and_b32 s{sH}, s{sWV}, 3
s_xor_b32 s{sA}, s{sWV}, 4
s_lshl_b32 s{sB}, s2, 3
s_add_u32 s{sA}, s{sA}, s{sB}
s_lshl_b32 s{sE}, s{sA}, 10
s_waitcnt lgkmcnt(0)
s_load_dword s{sTAG}, s[{pWS}:{pWS+1}], 0
""")
if OPT["probe"] == 1:
    srd(sT0, 14, 2097152)
    a("v_lshrrev_b32 v1, 2, v28\nv_and_b32 v1, 63, v1")
    for i in range(16): a(f"buffer_load_dword v4, v1, {S(sT0,4)}, s{sE} offen offset:{(i%8)*128+(i//8)*64}\ns_waitcnt vmcnt(0)")
if OPT["probe"] >= 2:
    srd(sT0, pWS, WS_BYTES)
    a(f"s_lshl_b32 s{sA}, s{sE}, 4\ns_add_u32 s{sA}, s{sA}, {[0, 0, 0x4000000, 0xe000000, 0x8000000][OPT['probe']]}")
    for i in range(16): a(f"buffer_load_dwordx4 v[{64+4*i}:{67+4*i}], v28, {S(sT0,4)}, s{sA} offen\ns_add_u32 s{sA}, s{sA}, 1024")
    a("s_waitcnt vmcnt(0)")
srd(sT0, pX, 2097152)
a.vm(f"buffer_load_dwordx4 v[4:7], v28, {S(sT0,4)}, s{sE} offen", "x")
srd(sWS, pWS, WS_BYTES)
a(f"s_cmp_ge_u32 s{sWV}, 4\ns_cbranch_scc1 H_PRE")
q0 = list(a.vmq)

vQ, vIDX, vL16, vTMP, vGO, vOK, vOV = 48, 52, 53, 54, 55, 56, 57
KV = 64
def Kq(i): return KV + 12 * i
def kraw(i): return Kq(i // 4) + i % 4
def vraw(i): return Kq(3 + i // 4) + i % 4
if OPT["stamp"]: a(f"v_mov_b32 v{vSTA}, 0\nv_writelane_b32 v{vSTA}, s{sST}, 0")
a(f"""
v_mov_b32 v8, -1
v_mov_b32 v9, -1
v_mov_b32 v10, -1
v_mov_b32 v11, -1
v_lshrrev_b32 v1, 3, v29
v_lshlrev_b32 v1, 15, v1
v_and_b32 v3, 0x70, v28
s_cmp_eq_u32 s{sWV}, 0
s_cselect_b32 s{sB}, 0, {OOB}
v_add3_u32 v1, v1, v3, s{sB}
s_lshl_b32 s{sA}, s2, 7
s_add_u32 s{sA}, s{sA}, {KVG}
""")
a.vm(f"buffer_store_dwordx4 v[8:11], v1, {WSD}, s{sA} offen sc1", "clear")
srd(sT0, pBK, 2097152); srd(sT1, pBV, 2097152)
a(f"""
v_and_b32 v3, 0xff, v0
v_lshlrev_b32 v1, 2, v3
v_lshlrev_b32 v30, 4, v3
s_lshl_b32 s{sA}, s2, 13
s_sub_u32 s{sB}, s{sA}, 3072
s_cmp_eq_u32 s2, 0
s_cselect_b32 s{sB}, 0, s{sB}
s_cselect_b32 s{sC}, {OOB}, 0
v_add_u32 v3, s{sC}, v1
s_add_u32 s{sC}, s{sA}, 4096
""")
for i in range(3): a.vm(f"buffer_load_dword v{kraw(i)}, v3, {S(sT0,4)}, s{sB} offen offset:{1024*i}")
for i in range(8): a.vm(f"buffer_load_dword v{kraw(3+i)}, v1, {S(sT0,4)}, s{sA if i < 4 else sC} offen offset:{1024*(i%4)}")
for i in range(8): a.vm(f"buffer_load_dword v{vraw(i)}, v1, {S(sT1,4)}, s{sA if i < 4 else sC} offen offset:{1024*(i%4)}")
srd(sT0, pSH, 4096)
a.vm(f"buffer_load_dwordx4 {R(Kq(5),4)}, v30, {S(sT0,4)}, 0 offen", "kv")
a(f"""
v_mov_b64 v[12:13], 0
v_mov_b64 v[14:15], 0
ds_write_b128 v28, v[12:15]
v_mov_b32 v{vIDX}, 0xdddd
v_mov_b32 v{vL16}, v28
v_and_b32 v3, 31, v29
v_lshrrev_b32 v1, 5, v29
s_lshl_b32 s{sA}, s{sH}, 13
s_add_u32 s{sA}, s{sA}, {KVG}
v_lshlrev_b32 v{vOK}, 5, v3
v_lshl_add_u32 v{vOK}, v1, 4, v{vOK}
v_add_u32 v{vOK}, s{sA}, v{vOK}
s_add_u32 s{sA}, s{sA}, 32768
v_lshlrev_b32 v{vOV}, 3, v3
v_lshl_add_u32 v{vOV}, v1, 8, v{vOV}
v_add_u32 v{vOV}, s{sA}, v{vOV}
v_cmp_eq_u32 vcc, 16, v3
v_mov_b32 v16, 0x3f803f80
s_lshl_b64 s[{sEX1}:{sEX1+1}], 1, s{sH}
s_mov_b32 s{sEXV}, 0xffff
s_mov_b32 s{sEXV+1}, 0xffff
v_cndmask_b32 v16, 0, v16, vcc
v_mov_b32 v17, v16
""")
for i in range(16):
    for r in range(4, 12, 2): a(f"v_mov_b64 {R(Kq(i)+r,2)}, v[16:17]")
a(f"s_mul_i32 s{sD}, s{sH}, {XNS}\ns_add_u32 s{sD}, s{sD}, {XNB + 12*XNS}")
stamp(30, vSTA)
a.wvm("x")
stamp(31, vSTA)
qa = list(a.vmq)
a(f"s_call_b64 s[{sLK}:{sLK+1}], LN0\ns_branch A_MAIN")

vL, vH16, vZ, vONE, vQW, vQB, vRA, vRL, vRW, vCP, vOB, vPXR, vXTW, vXTR, vWO, vKR, vKG, vTG, vPXB = range(128, 147)
WO3, YR, XR, T = 148, 180, 188, 196
WKV = T + 28
a.label("H_PRE")
a.vmq = list(q0)
if OPT["stamp"]: a(f"v_mov_b32 v{vSTH}, 0\nv_writelane_b32 v{vSTH}, s{sST}, 0")
srd(sT0, pWK, 16384); srd(sT1, pWV, 16384)
a(f"""
s_mul_i32 s{sWP}, s{sH}, {WSZ}
s_add_u32 s{sWP}, s{sWP}, {W}
s_lshl_b32 s{sA}, s{sH}, 12
s_mov_b32 m0, s{sWP}
s_add_u32 s{sB}, s{sWP}, 4096
""")
for i in range(4): a.vm(f"buffer_load_dwordx4 v28, {S(sT0,4)}, s{sA} offen offset:{1024*i} lds")
a(f"s_mov_b32 m0, s{sB}\ns_nop 0")
for i in range(4): a.vm(f"buffer_load_dwordx4 v28, {S(sT1,4)}, s{sA} offen offset:{1024*i} lds", "wkv")
srd(sT1, pWQ, 524288)
vWQS, vTQ0, vTQ1 = WO3, WO3 + 1, WO3 + 2
a(f"""
v_lshrrev_b32 v1, 2, v29
v_lshlrev_b32 v1, 10, v1
v_and_b32 v3, 3, v29
v_lshrrev_b32 v8, 5, v29
v_lshlrev_b32 v8, 1, v8
v_xor_b32 v3, v3, v8
v_lshl_add_u32 v{vWQS}, v3, 4, v1
s_lshl_b32 s{sP1}, s{sJ}, 8
s_lshl_b32 s{sA}, s{sH}, 6
s_add_u32 s{sP1}, s{sP1}, s{sA}
""")
def wq_slot(p): return 8 + p if p < 16 else (p - 16 if p < 24 else p - 16)
def wq_dma(p0, p1):
    for p in range(p0, p1):
        a(f"s_add_u32 m0, s{sWP}, {1024*wq_slot(p)}")
        a(f"s_add_u32 s{sA}, s{sP1}, {16384*p}")
        a.vm(f"buffer_load_dwordx4 v{vWQS}, {S(sT1,4)}, s{sA} offen lds", f"wq{p}")
wq_dma(0, 16)
a(f"""
v_mov_b32 v{vL}, v29
v_mov_b32 v{vH16}, v28
v_mov_b32 v{vZ}, 0
v_mov_b32 v{vONE}, 1
v_and_b32 v1, 15, v29
v_lshrrev_b32 v3, 4, v29
v_and_b32 v8, 3, v29
v_lshrrev_b32 v9, 2, v1
v_and_b32 v10, 1, v3
v_lshrrev_b32 v11, 1, v3
s_lshl_b32 s{sA}, s{sH}, 7
s_add_u32 s{sA}, s{sA}, {QO}
v_lshlrev_b32 v12, 10, v9
v_lshl_add_u32 v12, v8, 4, v12
v_lshl_add_u32 v13, v11, 9, v12
v_lshl_add_u32 v13, v10, 3, v13
v_add_u32 v{vQW}, s{sA}, v13
v_lshl_add_u32 v13, v10, 9, v12
v_lshl_add_u32 v13, v11, 6, v13
v_add_u32 v{vOB}, {QO}, v13
v_mul_u32_u24 v13, {XNS}, v1
v_lshl_add_u32 v{vQB}, v3, 4, v13
s_lshl_b32 s{sA}, s{sH}, 9
s_add_u32 s{sA}, s{sA}, {PB}
v_lshl_add_u32 v{vRA}, v29, 3, s{sA}
v_lshrrev_b32 v13, 1, v29
v_lshlrev_b32 v14, 2, v13
v_add_u32 v{vRL}, {PB+2048}, v14
s_lshr_b32 s{sA}, s{sH}, 1
s_lshl_b32 s{sA}, s{sA}, 9
s_and_b32 s{sB}, s{sH}, 1
s_lshl_b32 s{sB}, s{sB}, 3
s_add_u32 s{sA}, s{sA}, s{sB}
s_add_u32 s{sA}, s{sA}, {QO}
v_and_b32 v15, 1, v29
v_lshlrev_b32 v14, 4, v13
v_lshl_add_u32 v14, v15, 2, v14
v_add_u32 v{vRW}, s{sA}, v14
v_lshlrev_b32 v{vCP}, 4, v8
s_lshl_b32 s{sA}, s{sH}, 6
v_lshlrev_b32 v14, 8, v13
v_lshl_add_u32 v14, v15, 5, v14
v_add_u32 v{vPXR}, s{sA}, v14
v_lshlrev_b32 v14, 6, v8
v_lshl_add_u32 v{vPXB}, v3, 4, v14
s_lshl_b32 s{sA}, s{sH}, 9
s_add_u32 s{sA}, s{sA}, {XT}
v_mul_u32_u24 v14, {XTS}, v8
v_lshl_add_u32 v14, v3, 4, v14
v_add_u32 v{vXTW}, s{sA}, v14
s_mul_i32 s{sA}, s{sH}, {XTS}
s_add_u32 s{sA}, s{sA}, {XT}
v_lshl_add_u32 v{vXTR}, v29, 5, s{sA}
v_add_u32 v{vWO}, s{sWP}, v28
v_lshlrev_b32 v14, 4, v8
v_lshl_add_u32 v14, v11, 2, v14
v_add_u32 v14, v14, v9
v_lshl_add_u32 v15, v11, 4, v1
v_add_u32 v15, 64, v15
v_cmp_eq_u32 vcc, 1, v10
v_lshlrev_b32 v13, 15, v3
v_lshl_add_u32 v{vKG}, v1, 3, v13
v_cndmask_b32 v14, v14, v15, vcc
v_lshlrev_b32 v14, 4, v14
v_add_u32 v{vKR}, {KVP}, v14
v_bfe_u32 v13, v29, 2, 2
v_lshlrev_b32 v14, 9, v3
v_lshl_add_u32 v14, v13, 6, v14
v_lshl_add_u32 v14, v8, 3, v14
v_lshl_add_u32 v14, v10, 5, v14
v_add_u32 v{vTQ0}, s{sWP}, v14
v_xor_b32 v{vTQ1}, 32, v{vTQ0}
v_lshlrev_b32 v14, 8, v3
v_lshl_add_u32 v14, v1, 3, v14
v_add_u32 v31, s{sWP}, v14
v_mul_u32_u24 v14, {XNS}, v8
v_lshl_add_u32 v14, v3, 4, v14
v_and_b32 v15, 1, v9
v_mul_u32_u24 v15, {XNB + 12*XNS - XN}, v15
s_lshl_b32 s{sA}, s{sH}, 8
s_add_u32 s{sA}, s{sA}, {XN}
v_add3_u32 v{T}, v14, v15, s{sA}
s_mov_b32 s{sHS}, 0
s_mov_b32 s{sSC}, 0x3eb8aa3b
s_mov_b32 s{sMSK}, 0xfff
s_mul_i32 s{sD}, s{sH}, {XNS}
s_add_u32 s{sD}, s{sD}, {XN}
""")
stamp(30, vSTH)
a.wvm("x")
stamp(31, vSTH)
qh = list(a.vmq)
a(f"s_call_b64 s[{sLK}:{sLK+1}], LN0\ns_branch H_MAIN")

a.label("LN0")
unpack(8, [4, 5, 6, 7])
normalize(8, 16, 24)
a(f"""
v_add_u32 v1, s{sD}, v28
s_add_u32 s{sE}, s{sE}, {XNG}
ds_write_b128 v1, v[24:27]
buffer_store_dwordx4 v[24:27], v28, {WSD}, s{sE} offen sc1
s_lshr_b32 s{sA}, s{sWV}, 2
s_xor_b32 s{sA}, s{sA}, 1
s_lshl_b32 s{sA}, s{sA}, 15
s_lshl_b32 s{sB}, s2, 7
s_lshl_b32 s{sC}, s{sH}, 2
s_add_u32 s{sB}, s{sB}, s{sC}
s_add_u32 s{sE}, s{sA}, s{sB}
s_add_u32 s{sE}, s{sE}, {FLX}
s_waitcnt lgkmcnt(0)
s_add_u32 s{sTAG}, s{sTAG}, 1
s_setpc_b64 s[{sLK}:{sLK+1}]
""")
a.label("A_MAIN")

a.vmq = qa + ["xn"]
stamp(32, vSTA)
vTGA = 59
a(f"""
v_mov_b32 v{vTGA}, s{sTAG}
s_lshl_b32 s{sA}, s2, 7
s_add_u32 s{sA}, s{sA}, {FLC}
s_cmp_eq_u32 s{sWV}, 0
s_cbranch_scc0 A_NOC
""")
q_ = list(a.vmq)
a.wvm("clear")
flag_store(vTGA, sA)
a.vmq = q_
a.label("A_NOC")
stamp(33, vSTA)
a("s_barrier")
stamp(1, vSTA)
a.wvm("kv")
a(f"v_mov_b32 v60, v30")
unpack(0, [kraw(i) for i in range(11)])
sk = Kq(5)
for i in range(4):
    if i % 2 == 0: a(f"v_lshlrev_b32 v{22+2*i}, 16, v{sk+i//2}\nv_lshlrev_b32 v{23+2*i}, 16, v{sk+2+i//2}")
    else: a(f"v_and_b32 v{22+2*i}, 0xffff0000, v{sk+i//2}\nv_and_b32 v{23+2*i}, 0xffff0000, v{sk+2+i//2}")
for t in range(8):
    d = R(30 + 2*t, 2)
    a(f"v_pk_mul_f32 {d}, {R(2*(t+3),2)}, v[22:23]")
    for i in range(1, 4): a(f"v_pk_fma_f32 {d}, {R(2*(t+3-i),2)}, {R(22+2*i,2)}, {d}")
    unpack(46, [vraw(t)])
    a(f"v_pk_mul_f32 {d}, {d}, v[46:47]")
for ch in range(2):
    for m in range(4): a(f"v_cvt_pk_bf16_f32 v{Kq(6+ch)+m}, v{30+2*(7-2*m)+ch}, v{30+2*(6-2*m)+ch}")
a(f"s_lshl_b32 s{sA}, s2, 13\ns_add_u32 s{sA}, s{sA}, {KVB}\ns_add_u32 s{sB}, s{sA}, 4096")
a.vm(f"buffer_store_dwordx4 {R(Kq(6),4)}, v60, {WSD}, s{sA} offen sc1")
a.vm(f"buffer_store_dwordx4 {R(Kq(7),4)}, v60, {WSD}, s{sB} offen sc1", "kvb")
a.wvm("xn")
flag_store(vTGA, sE)
stamp(2, vSTA)

def go_wait(val, sleep=0):
    L, ok = a.newlabel("gw"), a.newlabel("gwok")
    a.label(L)
    a(f"ds_read_b32 v{vGO}, v{vL16} offset:{CH}\ns_waitcnt lgkmcnt(0)\nv_readfirstlane_b32 s{sA}, v{vGO}\ns_cmp_ge_u32 s{sA}, {val}\ns_cbranch_scc1 {ok}")
    budget(L, sleep)
    a.label(ok)

go_wait("EV_KV1")
stamp(34, vSTA)
a(f"v_lshlrev_b32 v0, 3, v{vL16}\ns_lshl_b32 s{sB}, s{sH}, 13\ns_add_u32 s{sB}, s{sB}, {FLC}")
flag_wait([(1, 0, sB)])
a(f"s_lshl_b32 s{sB}, s2, 7\ns_lshl_b32 s{sC}, s{sH}, 2\ns_add_u32 s{sB}, s{sB}, s{sC}\ns_add_u32 s{sB}, s{sB}, {FLK}")
flag_store(vTGA, sB)
stamp(3, vSTA)
a(f"""
s_mov_b32 s{sLAY}, 0
s_mov_b32 s{sJOB}, 0
s_mov_b32 s{sTAB}, TAB0L
s_mov_b32 s{sTAB+1}, TAB0H
s_mov_b32 s{sNEED}, EV_Q0
s_setprio 1
""")
def exps(b, i0, i1):
    for i in range(i0, i1): a(f"v_exp_f32 v{b+i}, v{b+i}")
O = 32
def QK(t): a(f"v_mfma_f32_32x32x16_bf16 {R(16*(t&1),16)}, {R(Kq(t%16),4)}, {R(vQ,4)}, 0")
def PV(t, s_): a(f"v_smfmac_f32_32x32x32_bf16 {R(O,16)}, {R(Kq(t%16)+4+4*s_,4)}, {R(16*(t&1)+8*s_,8)}, v{vIDX}")
stubs = []
def verify(g, n):
    L = a.newlabel("ver"); Rt = a.newlabel("ret"); ok = a.newlabel("verok")
    a(f"s_waitcnt vmcnt({n})")
    a.label(L)
    vals = []
    for i in range(4*g, 4*g+4): vals += [Kq(i), Kq(i)+4, Kq(i)+6, Kq(i)+8, Kq(i)+10]
    a(f"v_max_u32 v{vGO}, v{vals[0]}, v{vals[1]}")
    for k in range(2, 20, 2): a(f"v_max3_u32 v{vGO}, v{vGO}, v{vals[k]}, v{vals[k+1]}")
    a(f"v_cmp_eq_u32 vcc, -1, v{vGO}\ns_cbranch_vccnz {Rt}")
    a.label(ok)
    def stub():
        a.label(Rt)
        a(f"s_sub_i32 s{sBUD}, s{sBUD}, 1\ns_cmp_gt_i32 s{sBUD}, 0\ns_cbranch_scc0 {ok}\ns_sleep 2\ns_call_b64 s[{sLK}:{sLK+1}], LG{g}\ns_waitcnt vmcnt(0)\ns_branch {L}")
    stubs.append(stub)
def job_setup():
    a(f"""
    s_and_b32 s{sA}, s{sJOB}, 3
    s_mul_i32 s{sPB}, s{sA}, {PBS}
    s_mul_i32 s{sA}, s{sH}, {PBW}
    s_add_u32 s{sPB}, s{sPB}, s{sA}
    s_add_u32 s{sPB}, s{sPB}, {PB}
    s_add_u32 s{sJOB}, s{sJOB}, 1
    s_and_b32 s{sQ}, s{sJOB}, 7
    s_lshl_b32 s{sQ}, s{sQ}, 10
    s_and_b32 s{sNEED}, s{sTAB}, 0xff
    s_lshr_b64 s[{sTAB}:{sTAB+1}], s[{sTAB}:{sTAB+1}], 8
    """)
def signal():
    a(f"s_mov_b64 exec, s[{sEX1}:{sEX1+1}]\nds_add_u32 v{vL16}, v{vIDX} offset:{CP}\ns_mov_b64 exec, -1")
def body(first):
    for t in range(16):
        b = 16 * (t & 1)
        if t == 0 and not first:
            exps(b, 0, 2); PV(15, 1); exps(b, 2, 5); QK(1)
            a(f"s_mov_b32 m0, s{sPB}")
            exps(b, 5, 12)
            a(f"v_add_u32 v{vTMP}, s{sPB}, v{vL16}")
            a(f"ds_write_b128 v{vTMP}, {R(O,4)}"); exps(b, 12, 13)
            a(f"ds_write_b128 v{vTMP}, {R(O+4,4)} offset:1024"); exps(b, 13, 14)
            a(f"ds_write_addtid_b32 v{O+8} offset:2048"); exps(b, 14, 15)
            for r in range(0, 8, 2): a(f"v_mov_b64 {R(O+r,2)}, 0")
            a(f"v_mov_b32 v{O+8}, 0")
            exps(b, 15, 16)
            continue
        if t == 1 and not first:
            exps(b, 0, 1); PV(0, 0); exps(b, 1, 4); PV(0, 1); exps(b, 4, 7); QK(2)
            signal()
            exps(b, 7, 11); PV(1, 0); exps(b, 11, 16)
            a("s_wakeup")
            continue
        exps(b, 0, 2)
        if t > 0: PV(t - 1, 1)
        exps(b, 2, 5)
        if first and t == 3:
            sk_ = a.newlabel("l2w")
            a(f"s_cmp_eq_u32 s{sLAY}, 0\ns_cbranch_scc1 {sk_}\ns_waitcnt vmcnt(0)")
            a.label(sk_)
            verify(1, 40)
        if first and t == 7:
            sk_ = a.newlabel("l2w")
            a(f"s_cmp_eq_u32 s{sLAY}, 0\ns_cbranch_scc1 {sk_}")
            stamp(9, vSTA)
            go_wait("EV_KVB")
            a(f"s_call_b64 s[{sLK}:{sLK+1}], LG2\ns_call_b64 s[{sLK}:{sLK+1}], LG3")
            a.label(sk_)
            verify(2, 20)
        if first and t == 11: verify(3, 0)
        if t == 15: a("s_waitcnt lgkmcnt(0)")
        QK(t + 1)
        if t == 12:
            job_setup()
            if OPT["stamp"]:
                a(f"s_memrealtime s[{sST}:{sST+1}]\ns_add_u32 m0, s{sJOB}, 39\ns_waitcnt lgkmcnt(0)\nv_writelane_b32 v{vSTA}, s{sST}, m0")
        if t == 13: a(f"ds_read_b32 v{vGO}, v{vL16} offset:{CH}")
        if t == 14:
            st, bk = a.newlabel("gst"), a.newlabel("gbk")
            a(f"s_waitcnt lgkmcnt(0)\nv_readfirstlane_b32 s{sA}, v{vGO}\nv_add_u32 v{vTMP}, s{sQ}, v{vL16}\ns_cmp_ge_u32 s{sA}, s{sNEED}\ns_cbranch_scc0 {st}")
            a.label(bk)
            a(f"ds_read_b128 {R(vQ,4)}, v{vTMP} offset:{QO}")
            def stub(st=st, bk=bk):
                a.label(st); go_wait(f"s{sNEED}"); a(f"s_branch {bk}")
            stubs.append(stub)
        exps(b, 5, 10); PV(t, 0); exps(b, 10, 16)

a.label("A_LAYER")
a(f"s_call_b64 s[{sLK}:{sLK+1}], LG0\ns_call_b64 s[{sLK}:{sLK+1}], LG1")
go_wait(f"s{sNEED}")
stamp(35, vSTA)
a(f"ds_read_b128 {R(vQ,4)}, v{vL16} offset:{QO}")
for r in range(0, 16, 2): a(f"v_mov_b64 {R(O+r,2)}, 0")
verify(0, 20)
a(f"s_waitcnt lgkmcnt(0)")
QK(0)
sk_ = a.newlabel("l1")
a(f"s_cmp_eq_u32 s{sLAY}, 0\ns_cbranch_scc0 {sk_}\ns_call_b64 s[{sLK}:{sLK+1}], LG2\ns_call_b64 s[{sLK}:{sLK+1}], LG3")
stamp(4, vSTA)
a.label(sk_)
a("s_nop 9")
body(True)
a(f"s_mov_b32 s{sCNT}, 7")
a(".p2align 3")
a.label("A_LOOP")
body(False)
a(f"s_sub_u32 s{sCNT}, s{sCNT}, 1\ns_cmp_lg_u32 s{sCNT}, 0\ns_cbranch_scc1 A_LOOP")
PV(15, 1)
a(f"""
s_mov_b32 m0, s{sPB}
v_add_u32 v{vTMP}, s{sPB}, v{vL16}
s_nop 9
ds_write_b128 v{vTMP}, {R(O,4)}
ds_write_b128 v{vTMP}, {R(O+4,4)} offset:1024
ds_write_addtid_b32 v{O+8} offset:2048
""")
signal()
a("s_wakeup")
a(f"s_cmp_eq_u32 s{sLAY}, 0\ns_cbranch_scc0 A_END")
stamp(8, vSTA)
a(f"""
s_mov_b32 s{sLAY}, 131072
s_mov_b32 s{sTAB}, TAB1L
s_mov_b32 s{sTAB+1}, TAB1H
s_mov_b32 s{sNEED}, EV_Q8
s_branch A_LAYER
""")
a.label("A_END")
def dump_stamps(v, l16):
    if OPT["stamp"]:
        a(f"s_lshl_b32 s{sA}, s2, 3\ns_add_u32 s{sA}, s{sA}, s{sWV}\ns_lshl_b32 s{sA}, s{sA}, 8\ns_add_u32 s{sA}, s{sA}, {STAMP}\nv_lshrrev_b32 v0, 2, v{l16}\nbuffer_store_dword v{v}, v0, {WSD}, s{sA} offen")
stamp(15, vSTA)
dump_stamps(vSTA, vL16)
a.label("EXIT")
a("s_endpgm")
for g in range(4):
    a.label(f"LG{g}")
    a(f"s_add_u32 s{sGR}, s{sLAY}, {(g>>1)*65536 + (g&1)*4096}")
    for i in range(4): a(f"buffer_load_dwordx4 {R(Kq(4*g+i),4)}, v{vOK}, {WSD}, s{sGR} offen offset:{1024*i} sc1")
    a(f"s_mov_b64 exec, s[{sEXV}:{sEXV+1}]")
    for i in range(4):
        for s_ in range(2):
            for u in range(2):
                a(f"buffer_load_dwordx2 {R(Kq(4*g+i)+4+4*s_+2*u,2)}, v{vOV}, {WSD}, s{sGR} offen offset:{1024*i+512*s_+128*u} sc1")
    a(f"s_mov_b64 exec, -1\ns_setpc_b64 s[{sLK}:{sLK+1}]")
for s_ in stubs: s_()

hs_count = [0]
EV = {}
def hsync_code(tmp):
    L, ok = a.newlabel("hs"), a.newlabel("hsok")
    a(f"""
    s_add_u32 s{sHS}, s{sHS}, 4
    s_mov_b64 exec, 1
    ds_add_rtn_u32 v{tmp}, v{vZ}, v{vONE} offset:{CH}
    s_mov_b64 exec, -1
    s_waitcnt lgkmcnt(0)
    v_readfirstlane_b32 s{sA}, v{tmp}
    s_add_u32 s{sA}, s{sA}, 1
    s_cmp_ge_u32 s{sA}, s{sHS}
    s_cbranch_scc1 {ok}
    """)
    a.label(L)
    a(f"ds_read_b32 v{tmp}, v{vZ} offset:{CH}\ns_waitcnt lgkmcnt(0)\nv_readfirstlane_b32 s{sA}, v{tmp}\ns_cmp_ge_u32 s{sA}, s{sHS}\ns_cbranch_scc1 {ok}")
    budget(L)
    a.label(ok)
    a.lgq.clear()
SUB_HS = {"HSYNC": 1, "KVPROJ": 1, "QPASS": 1, "RED": 0, "OPASS": 0, "XNSTAGE": 0, "PXWAIT": 0, "ROWOPS": 1, "ROWOPS_L1": 3}
def call(n, ev=None, label=None):
    a(f"s_call_b64 s[{sLK}:{sLK+1}], {label or n}")
    hs_count[0] += SUB_HS[n]
    a.lgq.clear()
    if ev: EV[ev] = 4 * hs_count[0]
def ret(): a(f"s_setpc_b64 s[{sLK}:{sLK+1}]")
HT = T + 27

a.label("H_MAIN")
a.vmq = qh + ["xn"]
a(f"v_mov_b32 v{vTG}, s{sTAG}\ns_setprio 2")
stamp(32, vSTH)
a.wvm("wkv")
stamp(33, vSTH)
for m in range(2):
    for s_ in range(4):
        for u in range(2):
            a.lg(f"ds_read_b64_tr_b16 {R(WKV+16*m+4*s_+2*u,2)}, v31 offset:{4096*m+1024*s_+128*u}")
        if m == 1 and s_ == 1: a.wlg()
a.wlg()
a("s_barrier")
stamp(1, vSTH)
wq_dma(16, 24)
a(f"s_lshl_b32 s{sKVO}, s2, 7\ns_add_u32 s{sKVO}, s{sKVO}, {KVG}\ns_mov_b64 s[{sEXK}:{sEXK+1}], -1")
call("KVPROJ", "KV1")
stamp(2, vSTH)
sk_ = a.newlabel("st")
a(f"s_cmp_eq_u32 s2, 0\ns_cbranch_scc0 {sk_}\ns_lshl_b32 s{sA}, s{sH}, 13\ns_add_u32 s{sA}, s{sA}, {WKVF}\ns_add_u32 s{sB}, s{sA}, 4096")
for i in range(8): a(f"buffer_store_dwordx4 {R(WKV+4*i,4)}, v{vH16}, {WSD}, s{sA if i < 4 else sB} offen offset:{1024*(i%4)} sc1")
a.label(sk_)
def wq_tr(s0, s1):
    for s_ in range(s0, s1):
        for hh in range(2):
            for u in range(2):
                a.lg(f"ds_read_b64_tr_b16 {R((hh*16+s_)*4+2*u,2)}, v{vTQ1 if hh else vTQ0} offset:{1024*wq_slot(2*s_)+256*u}")
        if (s_ - s0) % 3 == 2: a.wlg()
a.wvm("wq7"); wq_tr(0, 4); a.wlg()
wq_dma(24, 32)
a.wvm("xn"); flag_store(vTG, sE)
wq_tr(4, 8)
a.wvm("wq23"); wq_tr(8, 12)
a.wvm("wq31"); wq_tr(12, 16)
a.wlg()
stamp(3, vSTH)
vPB_, vPW_ = T + 40, T + 41
a(f"""
v_and_b32 v{T}, 12, v{vL}
v_mul_u32_u24 v{T}, {XNS}, v{T}
v_sub_u32 v{vPB_}, v{vQB}, v{T}
v_add_u32 v{vPB_}, {XN}, v{vPB_}
v_mov_b32 v{vPW_}, v{vQW}
""")
call("QPASS", "Q0")
stamp(4, vSTH)
KR = WO3
a(f"""
s_and_b32 s{sA}, s2, 7
s_lshl_b32 s{sA}, s{sA}, 5
s_lshr_b32 s{sB}, s2, 3
s_add_u32 s{sPOS}, s{sA}, s{sB}
s_lshl_b32 s{sA}, s{sPOS}, 1
s_lshr_b32 s{sB}, s{sH}, 1
s_add_u32 s{sA}, s{sA}, s{sB}
s_lshl_b32 s{sC}, s{sA}, 1
s_lshl_b32 s{sA}, s{sA}, 12
s_add_u32 s{sT0}, s{pSK}, s{sA}
s_addc_u32 s{sT0+1}, s{pSK+1}, 0
s_mov_b32 s{sT0+2}, 4096
s_mov_b32 s{sT0+3}, 0x20000
v_add_u32 v{KR+21}, -4, v{vH16}
""")
srd(sT1, pSD, 1024)
for i in range(4): a.vm(f"buffer_load_dwordx4 {R(KR+4*i,4)}, v{vH16}, {S(sT0,4)}, 0 offen offset:{1024*i}")
a.vm(f"buffer_load_dword v{KR+16}, v{KR+21}, {S(sT0,4)}, 0 offen")
for i in range(1, 4): a.vm(f"buffer_load_dword v{KR+16+i}, v{vH16}, {S(sT0,4)}, 0 offen offset:{1024*i-4}")
a.vm(f"buffer_load_ushort v{KR+20}, off, {S(sT1,4)}, s{sC}")
def xnstage(layer, half, dst):
    a(f"s_mov_b32 s{sP1}, {FLX + (layer*2+half)*0x8000}\ns_mov_b32 s{sP2}, {XNG + layer*0x200000 + half*4096}\ns_mov_b32 s{sP3}, {dst + (1-half)*4*XNS}")
    call("XNSTAGE"); a.vmq.clear()
xnstage(0, 0, XN); xnstage(0, 1, XNB)
sk_ = a.newlabel("st")
a(f"s_cmp_eq_u32 s2, 0\ns_cbranch_scc0 {sk_}\ns_lshl_b32 s{sA}, s{sH}, 2\ns_add_u32 s{sA}, s{sA}, {FLW}")
flag_store(vTG, sA); a.vmq.clear()
a.label(sk_)
call("HSYNC")
def qpass(half, src, ev):
    a(f"v_add_u32 v{vPB_}, {src}, v{vQB}\nv_add_u32 v{vPW_}, {4096*half}, v{vQW}")
    call("QPASS", ev)
qpass(0, XN, "Q1")
stamp(5, vSTH)
qpass(1, XNB, "Q4")
stamp(6, vSTH)

a(f"v_mov_b64 {R(T,2)}, 0\nv_mov_b64 {R(T+2,2)}, 0")
for i in range(4):
    a(f"ds_write_b128 v{vWO}, {R(KR+4*i,4)} offset:{C0+1024*i}")
    for m in range(4):
        a(f"v_alignbit_b32 v{T+4+4*i+m}, v{KR+4*i+m}, v{KR+4*i+m-1 if m else KR+16+i}, 16")
    a(f"ds_write_b128 v{vWO}, {R(T+4+4*i,4)} offset:{C1+1024*i}")
a(f"""
v_lshrrev_b32 v{T+20}, 5, v{vL}
v_lshl_add_u32 v{T+21}, v{T+20}, 10, v{vWO}
ds_write_b128 v{T+21}, {R(T,4)} offset:{UF}
v_lshrrev_b32 v{T+21}, 1, v{vL}
v_mul_u32_u24 v{T+21}, {2080-32}, v{T+21}
v_add_u32 v{T+21}, v{T+21}, v{vWO}
s_mov_b64 exec, 0x3ff
ds_write_b128 v{T+21}, {R(T,4)} offset:{YS}
s_mov_b64 exec, 1
ds_write_b128 v{vWO}, {R(T,4)}
ds_write_b128 v{vWO}, {R(T,4)} offset:{C1-16}
s_mov_b64 exec, -1
v_lshlrev_b32 v{T+22}, 9, v{vL}
v_lshlrev_b32 v{T+23}, 15, v{vL}
s_and_b32 s{sC}, s{sH}, 1
s_lshl_b32 s{sB}, s{sC}, 8
s_lshr_b32 s{sD}, s{sPOS}, 6
s_lshl_b32 s{sD}, s{sD}, 2
s_add_u32 s{sB}, s{sB}, s{sD}
s_add_u32 s{sP1}, s{sB}, {FLK}
s_add_u32 s{sP2}, s{sP1}, 128
""")
flag_wait([(T+24, T+22, sP1), (T+25, T+22, sP2)])
a(f"""
s_lshl_b32 s{sC}, s{sC}, 14
s_lshr_b32 s{sB}, s{sH}, 1
s_lshl_b32 s{sB}, s{sB}, 12
s_add_u32 s{sC}, s{sC}, s{sB}
s_lshl_b32 s{sB}, s{sPOS}, 4
s_add_u32 s{sC}, s{sC}, s{sB}
s_add_u32 s{sP1}, s{sC}, {KVB}
s_add_u32 s{sP2}, s{sP1}, 8192
""")
a.vm(f"buffer_load_dwordx4 {R(T+4,4)}, v{T+23}, {WSD}, s{sP1} offen sc1")
a.vm(f"buffer_load_dwordx4 {R(T+8,4)}, v{T+23}, {WSD}, s{sP2} offen sc1")
CA, CB, ACC = 212, 228, 148
vA0, vA1, vB0 = 252, 253, 254
AD = CA + 12
a(f"""
v_and_b32 v{T+12}, 1, v{vL}
v_xor_b32 v{T+13}, 1, v{T+12}
v_lshlrev_b32 v{T+14}, 4, v{T+13}
v_lshlrev_b32 v{T+14}, v{T+14}, v{KR+20}
v_lshrrev_b32 v{T+15}, 1, v{vL}
""")
for m in range(4):
    a(f"v_cmp_eq_u32 vcc, {3-m}, v{T+15}\ns_nop 1\nv_cndmask_b32 v{AD+m}, 0, v{T+14}, vcc")
a(f"""
v_mul_u32_u24 v{T+13}, {C1-C0}, v{T+13}
v_lshl_add_u32 v{T+13}, v{T+15}, 2, v{T+13}
s_add_u32 s{sA}, s{sWP}, {C0-12}
v_add_u32 v{vA0}, s{sA}, v{T+13}
v_add_u32 v{vA1}, 2048, v{vA0}
v_and_b32 v{T+13}, 31, v{vL}
v_sub_u32 v{T+13}, v{T+13}, v{T+20}
s_add_u32 s{sA}, s{sWP}, {UF+32}
v_lshl_add_u32 v{vB0}, v{T+13}, 4, s{sA}
""")
a.wvm()
a(f"ds_write_b128 v{vWO}, {R(T+4,4)} offset:{UF+512}\nds_write_b128 v{vWO}, {R(T+8,4)} offset:{UF+1536+512}")
a.wlg()
stamp(7, vSTH)
def mm32(d, A, B, c): a(f"v_mfma_f32_32x32x16_bf16 {R(d,16)}, {R(A,4)}, {R(B,4)}, {c}")
def rdA(E, hi):
    d = CA + 8 * (E & 1) + 4 * hi
    for u in range(2):
        a.lg(f"ds_read2_b32 {R(d+2*u,2)}, v{vA1 if hi else vA0} offset0:{(E&7)*32+2*u} offset1:{(E&7)*32+2*u+1}", ("A", E, hi))
def bslot(E, ff): return CB + 8 * ((2 * E + ff) % 3)
def rdB(E, ff):
    for T_ in range(2):
        a.lg(f"ds_read_b128 {R(bslot(E,ff)+4*T_,4)}, v{vB0} offset:{(30-2*E)*16+512*T_+1536*ff}", ("B", E, ff))
a(f"s_setprio {OPT['pc']}")
rdB(0, 0); rdB(0, 1); rdA(0, 0); rdA(0, 1)
a.wlg(("B", 0, 1))
for ff in range(2):
    for T_ in range(2): mm32(ACC + 32*ff + 16*T_, AD, bslot(0, ff) + 4*T_, 0)
for E in range(16):
    A0 = CA + 8 * (E & 1)
    for ff in range(2):
        if E == 7 and ff == 0: a(f"v_add_u32 v{vA0}, 1024, v{vA0}\nv_add_u32 v{vA1}, 1024, v{vA1}")
        if E < 15:
            if ff == 0: rdB(E + 1, 0)
            rdA(E + 1, ff)
        tags = [t_ for t_ in (("A", E, 1), ("B", E, ff)) if t_ in a.lgq]
        if tags: a.wlg(max(tags, key=lambda t_: a.lgq.index(t_)))
        b = bslot(E, ff); c0 = ACC + 32*ff
        mm32(c0 + 16, A0, b + 4, R(c0 + 16, 16)); mm32(c0, A0, b, R(c0, 16)); mm32(c0 + 16, A0 + 4, b, R(c0 + 16, 16))
        if E < 15 and ff == 0: rdB(E + 1, 1)
a("s_setprio 2")
stamp(8, vSTH)
a(f"""
v_and_b32 v{CA}, 31, v{vL}
v_lshrrev_b32 v{CA+1}, 5, v{vL}
v_lshlrev_b32 v{CA+2}, 5, v{CA}
v_lshl_add_u32 v{CA+2}, v{CA+1}, 4, v{CA+2}
v_add_u32 v{CA+2}, s{sWP}, v{CA+2}
s_and_b32 s{sA}, s{sH}, 1
s_lshl_b32 s{sA}, s{sA}, 1
v_add_u32 v{CA+1}, s{sA}, v{CA+1}
s_lshr_b32 s{sA}, s{sH}, 1
s_lshl_b32 s{sA}, s{sA}, 5
s_add_u32 s{sA}, s{sA}, {W+YS}
v_lshl_add_u32 v{CA}, v{CA}, 6, s{sA}
""")
for T_ in range(2):
    f0, f1 = ACC + 16*T_, ACC + 32 + 16*T_
    a(f"ds_write_b128 v{CA+2}, {R(f0,4)} offset:{YS+32+1024*T_}")
    for q in range(1, 4):
        for u in (0, 2): a(f"v_pk_add_f32 {R(f0+4*q+u,2)}, {R(f0+4*q+u,2)}, {R(f1+4*q-4+u,2)}")
        a(f"ds_write_b128 v{CA+2}, {R(f0+4*q,4)} offset:{YS+32+1024*T_+2080*q}")
    a(f"ds_write_b128 v{CA+2}, {R(f1+12,4)} offset:{YS+32+1024*T_+2080*4}")
c1, c2, c3, zz = CA + 3, CA + 4, CA + 5, CA + 6
a(f"""
v_mul_u32_u24 v{CA+7}, 2080, v{CA+1}
v_add_u32 v{CA+7}, v{CA+7}, v{CA}
v_add_u32 v{c1}, 32, v{CA+7}
v_mov_b32 v{zz}, {W+YS}
v_add_u32 v{c2}, {WSZ-2*2080+32}, v{CA+7}
v_add_u32 v{c3}, {WSZ+2*2080}, v{CA+7}
v_add_u32 v{CA+8}, {4*2080}, v{CA}
v_cmp_eq_u32 vcc, 3, v{CA+1}
s_nop 1
v_cndmask_b32 v{c3}, v{c3}, v{zz}, vcc
v_cmp_eq_u32 vcc, 1, v{CA+1}
s_nop 1
v_cndmask_b32 v{c2}, v{c2}, v{zz}, vcc
v_cmp_eq_u32 vcc, 0, v{CA+1}
s_nop 1
v_cndmask_b32 v{c2}, v{c2}, v{CA+8}, vcc
""")
call("HSYNC")
for ch in range(2):
    for k_, c_ in enumerate((c1, c2, c3)):
        for g in range(2):
            a.lg(f"ds_read_b128 {R(ACC+24*ch+8*k_+4*g,4)}, v{c_} offset:{2*WSZ*ch+16*g}", ch)
a(f"s_lshl_b32 s{sA}, s{sPOS}, 13\ns_lshl_b32 s{sB}, s{sH}, 10\ns_add_u32 s{sA}, s{sA}, s{sB}\ns_add_u32 s{sP1}, s{sA}, {YP}\ns_add_u32 s{sP2}, s{sP1}, 4096")
for ch in range(2):
    a.wlg(ch)
    b = ACC + 24*ch
    for k_ in (1, 2):
        for u in range(0, 8, 2): a(f"v_pk_add_f32 {R(b+u,2)}, {R(b+u,2)}, {R(b+8*k_+u,2)}")
for e_ in range(8):
    r_ = 4*(e_ & 1) + (e_ >> 1)
    a(f"v_cvt_pk_bf16_f32 v{T+e_}, v{ACC+r_}, v{ACC+24+r_}")
a.vm(f"buffer_store_dwordx4 {R(T,4)}, v{vH16}, {WSD}, s{sP1} offen sc1")
a.vm(f"buffer_store_dwordx4 {R(T+4,4)}, v{vH16}, {WSD}, s{sP2} offen sc1", "y")
call("HSYNC")
stamp(9, vSTH)

srd(sT1, pWO, 524288)
vS0, vS1, vTA = T + 8, T + 9, T + 10
a(f"""
v_lshrrev_b32 v{T+20}, 4, v{vL}
v_bfe_u32 v{T+21}, v{vL}, 1, 3
v_lshlrev_b32 v{T+22}, 1, v{T+20}
v_xor_b32 v{T+21}, v{T+21}, v{T+22}
v_lshlrev_b32 v{T+22}, 10, v{T+20}
v_lshl_add_u32 v{T+22}, v{T+21}, 5, v{T+22}
v_and_b32 v{T+21}, 1, v{vL}
v_lshl_add_u32 v{vS0}, v{T+21}, 4, v{T+22}
v_xor_b32 v{vS1}, 32, v{vS0}
s_lshl_b32 s{sP3}, s{sJ}, 17
s_lshl_b32 s{sA}, s{sH}, 8
s_add_u32 s{sP3}, s{sP3}, s{sA}
""")
def wo_dma(s_, area):
    for bi in range(8):
        a(f"s_add_u32 m0, s{sWP}, {8192*area+1024*bi}\ns_add_u32 s{sA}, s{sP3}, {(32*s_+4*bi)*1024}")
        a.vm(f"buffer_load_dwordx4 v{vS1 if (bi>>1)&1 else vS0}, {S(sT1,4)}, s{sA} offen lds", f"wo{s_}")
wo_dma(3, 0); wo_dma(1, 1); wo_dma(2, 2)
a(f"""
v_bfe_u32 v{T+21}, v{vL}, 2, 2
v_and_b32 v{T+22}, 1, v{T+20}
v_lshl_add_u32 v{T+22}, v{T+21}, 1, v{T+22}
v_lshlrev_b32 v{T+23}, 11, v{T+20}
v_lshl_add_u32 v{T+23}, v{T+21}, 8, v{T+23}
v_lshl_add_u32 v{T+23}, v{T+22}, 5, v{T+23}
v_and_b32 v{T+21}, 3, v{vL}
v_lshl_add_u32 v{T+23}, v{T+21}, 3, v{T+23}
v_add_u32 v{vTA}, s{sWP}, v{T+23}
""")
for mt in range(1, 8): a(f"v_xor_b32 v{vTA+mt}, {32*mt}, v{vTA}")
a(f"s_lshl_b32 s{sA}, s{sPOS}, 7\ns_lshl_b32 s{sB}, s{sH}, 2\ns_add_u32 s{sA}, s{sA}, s{sB}\ns_add_u32 s{sB}, s{sA}, {FLY}")
a.wvm("y"); flag_store(vTG, sB)
def wo_tr(area, dst):
    for mt in range(8):
        for u in range(2): a.lg(f"ds_read_b64_tr_b16 {R(dst+4*mt+2*u,2)}, v{vTA+mt} offset:{8192*area+1024*u}")
        if mt == 3: a.wlg()
    a.wlg()
def wo_wr(area, src):
    for mt in range(8): a.lg(f"ds_write_b128 v{vWO}, {R(src+4*mt,4)} offset:{8192*area+1024*mt}")
    a.wlg()
a.wvm("wo3"); wo_tr(0, WO3)
wo_dma(0, 0)
srd(sT0, pX, 2097152)
a(f"s_lshl_b32 s{sA}, s2, 3\ns_add_u32 s{sA}, s{sA}, s{sH}\ns_lshl_b32 s{sA}, s{sA}, 10\ns_add_u32 s{sB}, s{sA}, 4096")
a.vm(f"buffer_load_dwordx4 {R(XR,4)}, v{vH16}, {S(sT0,4)}, s{sA} offen")
a.vm(f"buffer_load_dwordx4 {R(XR+4,4)}, v{vH16}, {S(sT0,4)}, s{sB} offen")
for s_ in (1, 2, 0):
    a.wvm(f"wo{s_}"); wo_tr(s_, WKV); wo_wr(s_, WKV)
srd(sT0, pOUT, 2097152)
stamp(10, vSTH)

a(f"s_mov_b32 s{sCPN}, 0")
def red(n):
    for _ in range(n): call("RED")
vOBp, vXTp, vPXp = T + 56, T + 57, T + 58
def opass(rnd, partner, own):
    half = rnd & 1
    m = 0xf000f000 if half else 0x000f000f
    a(f"s_mov_b32 s{sOWN}, {m:#x}\ns_mov_b32 s{sOWN+1}, {m:#x}\nv_add_u32 v{vOBp}, {4096*half}, v{vOB}\nv_mov_b32 v{T+8}, {ZERO}\nv_mov_b32 v{T+9}, {OOB}\nv_mov_b32 v{vXTp}, {LOOB}")
    if not own: a(f"v_cndmask_b32 v{vOBp}, v{vOBp}, v{T+8}, s[{sOWN}:{sOWN+1}]")
    else: a(f"v_cndmask_b32 v{vXTp}, v{vXTp}, v{vXTW}, s[{sOWN}:{sOWN+1}]")
    if not partner: a(f"v_cndmask_b32 v{vOBp}, v{T+8}, v{vOBp}, s[{sOWN}:{sOWN+1}]")
    else:
        a(f"""
        v_bfe_u32 v{T+10}, v{vL}, 2, 2
        s_add_u32 s{sA}, s{sJ}, {half}
        v_add_u32 v{T+10}, s{sA}, v{T+10}
        v_and_b32 v{T+10}, 3, v{T+10}
        v_lshl_add_u32 v{T+10}, v{T+10}, 15, v{vPXB}
        v_cndmask_b32 v{vPXp}, v{T+10}, v{T+9}, s[{sOWN}:{sOWN+1}]
        s_and_b32 s{sA}, s2, 0xfc
        s_lshl_b32 s{sA}, s{sA}, 15
        s_lshl_b32 s{sB}, s{sJ}, 13
        s_add_u32 s{sA}, s{sA}, s{sB}
        s_lshl_b32 s{sB}, s{sH}, 11
        s_add_u32 s{sA}, s{sA}, s{sB}
        s_add_u32 s{sPXW}, s{sA}, {PX + rnd*0x800000}
        """)
    a(f"s_mov_b32 s{sP1}, {int(partner)}")
def pxwait(rnd):
    a(f"s_lshl_b32 s{sPXR}, s2, 15\ns_add_u32 s{sPXR}, s{sPXR}, {PX + rnd*0x800000}")
    call("PXWAIT")
def rowops(rnd, ev=None):
    a(f"s_mov_b32 s{sHALF}, {rnd & 1}\ns_mov_b32 s{sLYR}, {rnd >> 1}")
    call("ROWOPS" if rnd >> 1 else "ROWOPS_L1", ev, "ROWOPS")

red(4); opass(0, True, True); call("HSYNC", "R3"); stamp(11, vSTH); call("OPASS")
stamp(12, vSTH)
a(f"""
v_lshlrev_b32 v{T+8}, 9, v{vL}
s_lshr_b32 s{sA}, s{sPOS}, 6
s_lshl_b32 s{sA}, s{sA}, 2
s_add_u32 s{sP1}, s{sA}, {FLY}
s_add_u32 s{sP2}, s{sP1}, 128
s_add_u32 s{sP3}, s{sP1}, 256
s_add_u32 s{sB}, s{sP1}, 384
s_lshl_b32 s{sC}, s{sH}, 2
s_add_u32 s{sC}, s{sC}, {FLW}
""")
flag_wait([(T+9, T+8, sP1), (T+10, T+8, sP2), (T+11, T+8, sP3), (T+12, T+8, sB), (T+13, vZ, sC)])
a(f"""
v_lshlrev_b32 v{T+8}, 15, v{vL}
s_lshl_b32 s{sA}, s{sPOS}, 4
s_lshr_b32 s{sB}, s{sH}, 1
s_lshl_b32 s{sB}, s{sB}, 12
s_add_u32 s{sA}, s{sA}, s{sB}
s_and_b32 s{sB}, s{sH}, 1
s_lshl_b32 s{sB}, s{sB}, 3
s_add_u32 s{sA}, s{sA}, s{sB}
s_add_u32 s{sA}, s{sA}, {YP}
""")
for u in range(4):
    a(f"buffer_load_dwordx2 {R(YR+2*u,2)}, v{T+8}, {WSD}, s{sA} offen sc1")
    if u < 3: a(f"s_add_u32 s{sA}, s{sA}, 8192")
stamp(13, vSTH)
pxwait(0); stamp(14, vSTH); rowops(0); stamp(15, vSTH)
red(3); opass(1, True, False); call("HSYNC", "R6"); stamp(16, vSTH); call("OPASS")
xnstage(1, 0, XN); call("HSYNC"); qpass(0, XN, "Q8"); stamp(17, vSTH)
pxwait(1); stamp(18, vSTH); opass(1, False, True); red(1); call("HSYNC"); stamp(19, vSTH); call("OPASS"); stamp(20, vSTH)
rowops(1); stamp(21, vSTH)
call("HSYNC", "KVB"); xnstage(1, 1, XN); call("HSYNC"); qpass(1, XN, "Q12"); stamp(22, vSTH)
red(4); opass(2, True, True); call("HSYNC", "R11"); call("OPASS"); pxwait(2); rowops(2); stamp(23, vSTH)
red(3); opass(3, True, False); call("HSYNC"); stamp(24, vSTH); call("OPASS")
pxwait(3); stamp(25, vSTH); opass(3, False, True); red(1); call("HSYNC"); stamp(26, vSTH); call("OPASS"); stamp(27, vSTH)
rowops(3)
stamp(28, vSTH)
dump_stamps(vSTH, vH16)
a(f"s_or_b32 s{sA}, s2, s{sH}\ns_cmp_eq_u32 s{sA}, 0\ns_cbranch_scc0 H_END")
flag_store(vTG, sA)
a.label("H_END")
a("s_endpgm")

a.label("HSYNC"); hsync_code(HT); ret()

def mm16(d, A, B, c): a(f"v_mfma_f32_16x16x32_bf16 {R(d,4)}, {R(A,4)}, {R(B,4)}, {c}")

a.label("RED")
r0 = T + 8
a(f"""
s_and_b32 s{sRPB}, s{sCPN}, 3
s_mul_i32 s{sRPB}, s{sRPB}, {PBS}
s_and_b32 s{sRSL}, s{sCPN}, 7
s_lshl_b32 s{sRSL}, s{sRSL}, 10
s_add_u32 s{sCPN}, s{sCPN}, 1
s_mul_i32 s{sCPT}, s{sCPN}, 0xdddd
v_add_u32 v{r0+12}, s{sRPB}, v{vRA}
v_add_u32 v{r0+13}, s{sRPB}, v{vRL}
v_add_u32 v{r0+14}, s{sRSL}, v{vRW}
""")
a.label("RED_W")
a(f"ds_read_b32 v{r0}, v{vCP} offset:{CP}\ns_waitcnt lgkmcnt(0)\nv_cmp_gt_u32 vcc, s{sCPT}, v{r0}\ns_cbranch_vccz RED_GO")
budget("RED_W", 4)
a.label("RED_GO")
a(f"ds_read2st64_b32 {R(r0+8,2)}, v{r0+13} offset0:0 offset1:9\nds_read2st64_b32 {R(r0+10,2)}, v{r0+13} offset0:18 offset1:27")
for w in range(4): a(f"ds_read_b64 {R(r0+2*w,2)}, v{r0+12} offset:{PBW*w}")
a(f"""
s_waitcnt lgkmcnt(4)
v_pk_add_f32 {R(r0+8,2)}, {R(r0+8,2)}, {R(r0+10,2)}
v_add_f32 v{r0+8}, v{r0+8}, v{r0+9}
v_rcp_f32 v{r0+10}, v{r0+8}
s_waitcnt lgkmcnt(0)
v_pk_add_f32 {R(r0,2)}, {R(r0,2)}, {R(r0+2,2)}
v_pk_add_f32 {R(r0+4,2)}, {R(r0+4,2)}, {R(r0+6,2)}
v_pk_add_f32 {R(r0,2)}, {R(r0,2)}, {R(r0+4,2)}
v_pk_mul_f32 {R(r0,2)}, {R(r0,2)}, {R(r0+10,2)} op_sel_hi:[1,0]
v_cvt_pk_bf16_f32 v{r0}, v{r0}, v{r0+1}
ds_write_b32 v{r0+14}, v{r0}
""")
ret()

a.label("QPASS")
a(f"s_setprio {OPT['pq']}")
qa_ = T + 32
for s_ in range(8): a.lg(f"ds_read_b128 {R(T+4*s_,4)}, v{vPB_} offset:{64*s_}", s_)
for s_ in range(16):
    a.wlg(s_)
    for hh in range(2): mm16(qa_ + 4*hh, (hh*16 + s_)*4, T + 4*(s_ % 8), R(qa_ + 4*hh, 4) if s_ else 0)
    if s_ < 8: a.lg(f"ds_read_b128 {R(T+4*s_,4)}, v{vPB_} offset:{64*(s_+8)}", s_ + 8)
a("s_setprio 2\ns_nop 5")
for i in range(0, 8, 2): a(f"v_pk_mul_f32 {R(qa_+i,2)}, {R(qa_+i,2)}, {S(sSC,2)} op_sel_hi:[1,0]")
pack(T, qa_)
a(f"ds_write_b64 v{vPW_}, {R(T,2)}\nds_write_b64 v{vPW_}, {R(T+2,2)} offset:64")
hsync_code(HT)
ret()

a.label("XNSTAGE")
a(f"""
v_and_b32 v{T+8}, 3, v{vL}
v_max_u32 v{T+8}, 1, v{T+8}
v_add_u32 v{T+8}, s{sJ}, v{T+8}
v_and_b32 v{T+8}, 3, v{T+8}
v_lshlrev_b32 v{T+8}, 7, v{T+8}
s_and_b32 s{sB}, s2, 0xfc
s_lshl_b32 s{sA}, s{sB}, 7
s_add_u32 s{sP1}, s{sP1}, s{sA}
s_lshl_b32 s{sA}, s{sH}, 2
s_add_u32 s{sP1}, s{sP1}, s{sA}
s_lshl_b32 s{sB}, s{sB}, 13
s_add_u32 s{sP2}, s{sP2}, s{sB}
s_lshl_b32 s{sA}, s{sH}, 10
s_add_u32 s{sP2}, s{sP2}, s{sA}
s_mul_i32 s{sA}, s{sH}, {XNS}
s_add_u32 s{sP3}, s{sP3}, s{sA}
""")
flag_wait([(T+9, T+8, sP1)])
for ip in range(1, 4):
    a(f"s_add_u32 s{sA}, s{sJ}, {ip}\ns_and_b32 s{sA}, s{sA}, 3\ns_lshl_b32 s{sA}, s{sA}, 13\ns_add_u32 s{sA}, s{sA}, s{sP2}")
    a.vm(f"buffer_load_dwordx4 {R(T+8+4*ip,4)}, v{vH16}, {WSD}, s{sA} offen sc1", ip)
a(f"v_add_u32 v{T+8}, s{sP3}, v{vH16}")
for ip in range(1, 4):
    a.wvm(ip); a(f"ds_write_b128 v{T+8}, {R(T+8+4*ip,4)} offset:{4*XNS*(ip-1)}")
ret()

a.label("OPASS")
a(f"s_setprio {OPT['po']}")
oB, oA, oC = T + 8, T + 24, T + 48
a(f"s_cmp_eq_u32 s{sP1}, 0")
def rdoA(mt):
    for s_ in range(3): a.lg(f"ds_read_b128 {R(oA+12*(mt&1)+4*s_,4)}, v{vWO} offset:{8192*s_+1024*mt}", mt)
for s_ in (3, 0, 1, 2): a.lg(f"ds_read_b128 {R(oB+4*s_,4)}, v{vOBp} offset:{128*s_}")
rdoA(0); rdoA(1)
def oepi(mt):
    c_ = oC + 4*(mt & 1); sk = a.newlabel("oe")
    a.lg(f"ds_write_b128 v{vXTp}, {R(c_,4)} offset:{64*mt}")
    a(f"s_cbranch_scc1 {sk}\nv_bfi_b32 v{c_}, s{sMSK}, v{vTG}, v{c_}\nbuffer_store_dwordx4 {R(c_,4)}, v{vPXp}, {WSD}, s{sPXW} offen offset:{256*mt} sc1")
    a.label(sk)
for mt in range(8):
    c_ = oC + 4*(mt & 1)
    a.wlg(mt)
    mm16(c_, WO3 + 4*mt, oB + 12, 0)
    for s_ in range(3): mm16(c_, oA + 12*(mt & 1) + 4*s_, oB + 4*s_, R(c_, 4))
    if mt < 6: rdoA(mt + 2)
    else: a("s_nop 2")
    if mt: oepi(mt - 1)
a("s_setprio 2\ns_nop 4")
oepi(7)
ret()

a.label("PXWAIT")
for ip in range(1, 4):
    a(f"s_add_u32 s{sA}, s{sJ}, {ip}\ns_and_b32 s{sA}, s{sA}, 3\ns_lshl_b32 s{sA}, s{sA}, 13\ns_add_u32 s{sP1+ip-1}, s{sA}, s{sPXR}")
a.label("PX_W")
for ip in range(3):
    for u in range(2): a(f"buffer_load_dwordx4 {R(T+8+8*ip+4*u,4)}, v{vPXR}, {WSD}, s{sP1+ip} offen offset:{16*u} sc1")
a(f"s_waitcnt vmcnt(0)\nv_xor_b32 v{T}, v{vTG}, v{T+8}")
for k_ in range(1, 6): a(f"v_bitop3_b32 v{T}, v{T+8+4*k_}, v{vTG}, v{T} bitop3:0xbe")
a(f"v_and_b32 v{T}, s{sMSK}, v{T}\nv_cmp_ne_u32 vcc, 0, v{T}\ns_cbranch_vccz PX_GO")
budget("PX_W", 4)
a.label("PX_GO")
unpack(T, [XR, XR+1, XR+2, XR+3])
for ip in range(3):
    for u in range(0, 8, 2): a(f"v_pk_add_f32 {R(T+u,2)}, {R(T+u,2)}, {R(T+8+8*ip+u,2)}")
ret()

a.label("ROWOPS")
a(f"s_cmp_eq_u32 s{sLYR}, 0\ns_cbranch_scc0 RO_1\ns_lshl_b32 s{sA}, s{sH}, 13\ns_add_u32 s{sA}, s{sA}, {WKVF}\ns_add_u32 s{sB}, s{sA}, 4096")
for i in range(8): a(f"buffer_load_dwordx4 {R(WKV+4*i,4)}, v{vH16}, {WSD}, s{sA if i < 4 else sB} offen offset:{1024*(i%4)} sc1")
a.label("RO_1")
hsync_code(HT)
a(f"ds_read_b128 {R(T+8,4)}, v{vXTR}\nds_read_b128 {R(T+12,4)}, v{vXTR} offset:16")
a(f"""
s_lshl_b32 s{sE}, s2, 1
s_add_u32 s{sE}, s{sE}, s{sHALF}
s_lshl_b32 s{sE}, s{sE}, 2
s_add_u32 s{sE}, s{sE}, s{sH}
s_lshl_b32 s{sE}, s{sE}, 10
s_waitcnt lgkmcnt(0)
""")
for u in range(0, 8, 2): a(f"v_pk_add_f32 {R(T+u,2)}, {R(T+u,2)}, {R(T+8+u,2)}")
stats(T, T + 16)
center(T + 8, T)
for u in range(4):
    unpack(T + 18, [YR + 2*u])
    a(f"v_pk_mul_f32 {R(T+8+2*u,2)}, {R(T+8+2*u,2)}, {R(T+18,2)}")
for u in range(0, 8, 2): a(f"v_pk_fma_f32 {R(T+u,2)}, {R(T+8+u,2)}, {R(T+16,2)}, {R(T+u,2)} op_sel_hi:[1,0,1]")
pack(XR, T)
a(f"s_cmp_eq_u32 s{sLYR}, 0\ns_cbranch_scc1 RO_2")
a(f"buffer_store_dwordx4 {R(XR,4)}, v{vH16}, {S(sT0,4)}, s{sE} offen\ns_nop 1\ns_branch RO_3")
a.label("RO_2")
normalize(T, T + 16, T + 8)
a(f"""
s_mul_i32 s{sA}, s{sHALF}, {12*XNS}
s_mul_i32 s{sB}, s{sH}, {XNS}
s_add_u32 s{sB}, s{sB}, s{sA}
v_add_u32 v{T+12}, s{sB}, v{vH16}
ds_write_b128 v{T+12}, {R(T+8,4)} offset:{XN}
s_add_u32 s{sE}, s{sE}, {XNG + 0x200000}
buffer_store_dwordx4 {R(T+8,4)}, v{vH16}, {WSD}, s{sE} offen sc1
s_lshl_b32 s{sB}, s{sH}, 8
s_add_u32 s{sA}, s{sA}, s{sB}
s_add_u32 s{sA}, s{sA}, {XN}
v_and_b32 v{T}, 12, v{vL}
v_mul_u32_u24 v{T}, {XNS}, v{T}
v_sub_u32 v{T}, v{vQB}, v{T}
v_add_u32 v{T}, s{sA}, v{T}
s_lshl_b32 s{sKVO}, s2, 7
s_lshl_b32 s{sB}, s{sHALF}, 16
s_add_u32 s{sKVO}, s{sKVO}, s{sB}
s_add_u32 s{sKVO}, s{sKVO}, {KVG + 131072}
s_mov_b32 s{sEXK+1}, 0
""")
hsync_code(HT)
a(f"s_mov_b64 s[{sLK2}:{sLK2+1}], s[{sLK}:{sLK+1}]\ns_waitcnt vmcnt(1)\ns_call_b64 s[{sLK}:{sLK+1}], KVPROJ\ns_mov_b64 s[{sLK}:{sLK+1}], s[{sLK2}:{sLK2+1}]")
a(f"""
s_lshl_b32 s{sA}, s{sHALF}, 15
s_lshl_b32 s{sB}, s2, 7
s_add_u32 s{sA}, s{sA}, s{sB}
s_lshl_b32 s{sB}, s{sH}, 2
s_add_u32 s{sA}, s{sA}, s{sB}
s_add_u32 s{sA}, s{sA}, {FLX + 2*0x8000}
s_waitcnt vmcnt(0)
""")
flag_store(vTG, sA)
a.label("RO_3")
for u in range(4): a(f"v_swap_b32 v{YR+2*u}, v{YR+2*u+1}\nv_swap_b32 v{XR+u}, v{XR+4+u}")
ret()

a.label("KVPROJ")
for s_ in range(4): a.lg(f"ds_read_b128 {R(T+4+4*s_,4)}, v{T} offset:{64*s_}", s_)
a(f"s_lshl_b32 s{sA}, s{sH}, 11\ns_add_u32 s{sA}, s{sA}, {KVP}\nv_add_u32 v{T+1}, s{sA}, v{vH16}")
for s_ in range(4):
    a.wlg(s_)
    mm16(T + 20, WKV + 4*s_, T + 4 + 4*s_, R(T + 20, 4) if s_ else 0)
    mm16(T + 24, T + 4 + 4*s_, WKV + 16 + 4*s_, R(T + 24, 4) if s_ else 0)
a(f"s_nop 6\nds_write_b128 v{T+1}, {R(T+20,4)}\nds_write_b128 v{T+1}, {R(T+24,4)} offset:1024")
hsync_code(T)
a(f"s_cmp_eq_u32 s{sH}, 0\ns_cbranch_scc0 KV_END")
for w in range(4): a(f"ds_read_b128 {R(T+4+4*w,4)}, v{vKR} offset:{2048*w}")
a(f"""
s_waitcnt lgkmcnt(2)
v_pk_add_f32 {R(T+4,2)}, {R(T+4,2)}, {R(T+8,2)}
v_pk_add_f32 {R(T+6,2)}, {R(T+6,2)}, {R(T+10,2)}
s_waitcnt lgkmcnt(0)
v_pk_add_f32 {R(T+12,2)}, {R(T+12,2)}, {R(T+16,2)}
v_pk_add_f32 {R(T+14,2)}, {R(T+14,2)}, {R(T+18,2)}
v_pk_add_f32 {R(T+4,2)}, {R(T+4,2)}, {R(T+12,2)}
v_pk_add_f32 {R(T+6,2)}, {R(T+6,2)}, {R(T+14,2)}
v_cvt_pk_bf16_f32 v{T+4}, v{T+4}, v{T+5}
v_cvt_pk_bf16_f32 v{T+5}, v{T+6}, v{T+7}
v_min_u32 v{T+4}, -2, v{T+4}
s_mov_b64 exec, s[{sEXK}:{sEXK+1}]
buffer_store_dwordx2 {R(T+4,2)}, v{vKG}, {WSD}, s{sKVO} offen sc1
s_mov_b64 exec, -1
""")
a.label("KV_END")
ret()
a.label("CODE_END")

need0 = [EV["Q1"], EV["Q1"], EV["Q4"], EV["Q4"], EV["R3"], EV["R3"], EV["R3"], EV["R3"]]
need1 = [EV["R6"], EV["R6"], EV["R6"], EV["Q12"], EV["R11"], EV["R11"], EV["R11"], EV["R11"]]
def tab(l):
    v = sum(x << (8*i) for i, x in enumerate(l)); assert max(l) < 256
    return v & 0xffffffff, v >> 32
sets = {"EV_" + k: v for k, v in EV.items()}
sets["TAB0L"], sets["TAB0H"] = tab(need0); sets["TAB1L"], sets["TAB1H"] = tab(need1)
errs = check(a.lines)
for e_ in errs: print(e_, file=sys.stderr)
ref = open(f"cdna_kernels/{NAME}.s.ref").read()
hdr = ref[:ref.index("; Override launch geometry")]
out = hdr + f"; @launch grid=(256,1,1) block=(512,1,1) lds={LDS_BYTES}\n"
out += '.amdgcn_target "amdgcn-amd-amdhsa--gfx950"\n'
out += "".join(f".set {k}, {v:#x}\n" for k, v in sets.items())
out += f".text\n.globl {NAME}_kernel\n.p2align 8\n.type {NAME}_kernel,@function\n{NAME}_kernel:\n"
out += a.text()
out += f""".section .rodata,"a"
.p2align 6
.amdhsa_kernel {NAME}_kernel
  .amdhsa_next_free_vgpr 256
  .amdhsa_next_free_sgpr 102
  .amdhsa_accum_offset 256
  .amdhsa_group_segment_fixed_size 0
  .amdhsa_kernarg_size 112
  .amdhsa_user_sgpr_count 2
  .amdhsa_user_sgpr_kernarg_segment_ptr 1
  .amdhsa_system_sgpr_workgroup_id_x 1
  .amdhsa_float_denorm_mode_32 3
.end_amdhsa_kernel
"""
open(sys.argv[1], "w").write(out)
print("events", EV, "hazards", len(errs), file=sys.stderr)
```

```python
import sys
from asmdsl import Asm, R, S, check

NAME = "interleave_layers__grouped_kv_mqa__ssm_conv_h3__prompt"
OPT = dict(stamp=0, probe=0, pq=2, po=2, pc=0)
for a_ in sys.argv[2:]:
    k_, v_ = a_.split("="); OPT[k_] = int(v_)

CH, CP, ZERO = 0, 64, 512
QO = 3584
XN = 11776; XNS = 1056
XT = XN + 4 * XNS; XTS = 2112; KVP = XT
PB = 28672; PBW = 2304; PBS = 9216
XNB = PB + 2 * PBS
W = 65536; WSZ = 24576
LDS_BYTES = 163840
C0, C1, UF, YS = 16, 4176, 8272, 11344
FLW = 0x80; FLC = 0x8000; FLK = 0x10000; FLY = 0x18000; FLX = 0x20000
KVG = 0x40000; WKVF = 0x80000; STAMP = 0x100000
KVB = 0x200000; YP = 0x400000; XNG = 0x800000; PX = 0x1000000
WS_BYTES = 268435456
OOB = 0x7ff00000
LOOB = 0x2a000
pX, pWQ, pWK, pWV, pWO, pBK, pBV, pSH, pSK, pSD, pOUT, pWS = 4, 6, 8, 10, 12, 16, 18, 20, 22, 24, 26, 30
sWS, sT0, sT1, sT2 = 32, 36, 40, 44
sWV, sH, sJ, sTAG, sBUD = 48, 49, 50, 51, 52
sA, sB, sC, sD, sE = 53, 54, 55, 56, 57
sM = 58
sLK, sLK2 = 60, 62
sST = 64
sJOB, sPB, sQ, sNEED, sLAY, sGR, sCNT = 66, 67, 68, 69, 72, 73, 74
sTAB = 70
sEX1 = 76
sEXV = 78
sHS, sWP, sCPT, sRPB, sRSL, sCPN, sPOS = 66, 67, 68, 69, 70, 71, 72
sPXW, sPXR, sHALF, sKVO, sMSK = 73, 74, 75, 80, 81
sOWN = 76
sEXK = 78
sSC = 82
sP1, sP2, sP3 = 84, 85, 86
sLYR = 87

a = Asm()
def srd(d, p, n):
    a(f"s_mov_b32 s{d}, s{p}\ns_mov_b32 s{d+1}, s{p+1}\ns_mov_b32 s{d+2}, {n}\ns_mov_b32 s{d+3}, 0x20000")
WSD = S(sWS, 4)
def budget(loop, sleep=0):
    if sleep: a(f"s_sleep {sleep}")
    a(f"s_sub_i32 s{sBUD}, s{sBUD}, 1\ns_cmp_gt_i32 s{sBUD}, 0\ns_cbranch_scc1 {loop}")
vSTA, vSTH = 58, 147
def stamp(i, v):
    if OPT["stamp"]:
        a(f"s_memrealtime s[{sST}:{sST+1}]\ns_waitcnt lgkmcnt(0)\nv_writelane_b32 v{v}, s{sST}, {i}")
        a.lgq.clear()
def flag_store(vtag, soff):
    a("s_mov_b64 exec, 1")
    a.vm(f"buffer_store_dword v{vtag}, off, {WSD}, s{soff} sc1")
    a("s_mov_b64 exec, -1")
def flag_wait(loads, sleep=2):
    L, ok = a.newlabel("fw"), a.newlabel("fwok")
    a.label(L)
    for vd, vo, so in loads:
        a(f"buffer_load_dword v{vd}, v{vo}, {WSD}, s{so} offen sc1")
    a.wvm()
    v0 = loads[0][0]
    a(f"v_xor_b32 v{v0}, s{sTAG}, v{v0}")
    for vd, _, _ in loads[1:]:
        a(f"v_bitop3_b32 v{v0}, v{vd}, s{sTAG}, v{v0} bitop3:0xbe")
    a(f"v_cmp_ne_u32 vcc, 0, v{v0}\ns_cbranch_vccz {ok}")
    budget(L, sleep)
    a.label(ok)

def stats(x, t):
    a(f"""
    v_pk_add_f32 {R(t,2)}, {R(x,2)}, {R(x+2,2)}
    v_pk_mul_f32 {R(t+4,2)}, {R(x,2)}, {R(x,2)}
    v_pk_add_f32 {R(t+2,2)}, {R(x+4,2)}, {R(x+6,2)}
    v_pk_fma_f32 {R(t+4,2)}, {R(x+2,2)}, {R(x+2,2)}, {R(t+4,2)}
    v_pk_add_f32 {R(t,2)}, {R(t,2)}, {R(t+2,2)}
    v_pk_fma_f32 {R(t+4,2)}, {R(x+4,2)}, {R(x+4,2)}, {R(t+4,2)}
    v_add_f32 v{t}, v{t}, v{t+1}
    v_pk_fma_f32 {R(t+4,2)}, {R(x+6,2)}, {R(x+6,2)}, {R(t+4,2)}
    v_add_f32 v{t+1}, v{t+4}, v{t+5}
    s_nop 1
    v_permlane32_swap_b32 v{t}, v{t+1}
    v_add_f32 v{t}, v{t}, v{t+1}
    s_nop 1
    v_add_f32_dpp v{t}, v{t}, v{t} quad_perm:[1,0,3,2] row_mask:0xf bank_mask:0xf
    s_nop 1
    v_add_f32_dpp v{t}, v{t}, v{t} quad_perm:[2,3,0,1] row_mask:0xf bank_mask:0xf
    s_nop 1
    v_add_f32_dpp v{t}, v{t}, v{t} row_half_mirror row_mask:0xf bank_mask:0xf
    s_nop 1
    v_add_f32_dpp v{t}, v{t}, v{t} row_mirror row_mask:0xf bank_mask:0xf
    s_nop 1
    v_add_f32_dpp v{t}, v{t}, v{t} row_bcast:15 row_mask:0xa bank_mask:0xf
    v_mul_f32 v{t}, 0x3b000000, v{t}
    s_nop 0
    v_readlane_b32 s{sM+1}, v{t}, 63
    v_readlane_b32 s{sM}, v{t}, 31
    s_nop 0
    v_mov_b32 v{t}, s{sM+1}
    v_fma_f32 v{t}, -s{sM}, s{sM}, v{t}
    v_max_f32 v{t}, 0, v{t}
    v_add_f32 v{t}, 0x3727c5ac, v{t}
    v_rsq_f32 v{t}, v{t}
    """)
def center(d, x):
    for i in range(0, 8, 2):
        a(f"v_pk_add_f32 {R(d+i,2)}, {R(x+i,2)}, {S(sM,2)} op_sel_hi:[1,0] neg_lo:[0,1] neg_hi:[0,1]")
def unpack(d, srcs):
    for i, s_ in enumerate(srcs):
        a(f"v_lshlrev_b32 v{d+2*i}, 16, v{s_}\nv_and_b32 v{d+2*i+1}, 0xffff0000, v{s_}")
def pack(d, x, n=4):
    for i in range(n): a(f"v_cvt_pk_bf16_f32 v{d+i}, v{x+2*i}, v{x+2*i+1}")
def normalize(x, t, out):
    stats(x, t); center(x, x)
    for i in range(0, 8, 2):
        a(f"v_pk_mul_f32 {R(x+i,2)}, {R(x+i,2)}, {R(t,2)} op_sel_hi:[1,0]")
    pack(out, x)

a(f"""
s_cmp_ge_u32 s2, 256
s_cbranch_scc1 EXIT
s_load_dwordx16 s[4:19], s[0:1], 0
s_load_dwordx8 s[20:27], s[0:1], 64
s_load_dwordx4 s[28:31], s[0:1], 96
{"s_memrealtime s[%d:%d]" % (sST, sST+1) if OPT["stamp"] or OPT["probe"] >= 5 else ""}
s_getpc_b64 s[{sT2}:{sT2+1}]
""")
a.label("PC0")
a(f"""
s_mov_b32 s{sT2+2}, CODE_END-PC0
s_mov_b32 s{sT2+3}, 0x20000
v_lshlrev_b32 v1, 7, v0
""")
a.vm(f"buffer_load_dword v2, v1, {S(sT2,4)}, 0 offen")
a(f"""
v_lshrrev_b32 v1, 6, v0
v_and_b32 v29, 63, v0
v_readfirstlane_b32 s{sWV}, v1
v_lshlrev_b32 v28, 4, v29
s_and_b32 s{sJ}, s2, 3
s_mov_b32 s{sBUD}, 0x100000
s_and_b32 s{sH}, s{sWV}, 3
s_xor_b32 s{sA}, s{sWV}, 4
s_lshl_b32 s{sB}, s2, 3
s_add_u32 s{sA}, s{sA}, s{sB}
s_lshl_b32 s{sE}, s{sA}, 10
s_waitcnt lgkmcnt(0)
s_load_dword s{sTAG}, s[{pWS}:{pWS+1}], 0
""")
if OPT["probe"] == 1:
    srd(sT0, 14, 2097152)
    a("v_lshrrev_b32 v1, 2, v28\nv_and_b32 v1, 63, v1")
    for i in range(16): a(f"buffer_load_dword v4, v1, {S(sT0,4)}, s{sE} offen offset:{(i%8)*128+(i//8)*64}\ns_waitcnt vmcnt(0)")
if 2 <= OPT["probe"] <= 4:
    srd(sT0, pWS, WS_BYTES)
    a(f"s_lshl_b32 s{sA}, s{sE}, 4\ns_add_u32 s{sA}, s{sA}, {[0, 0, 0x4000000, 0xe000000, 0x8000000][OPT['probe']]}")
    for i in range(16): a(f"buffer_load_dwordx4 v[{64+4*i}:{67+4*i}], v28, {S(sT0,4)}, s{sA} offen\ns_add_u32 s{sA}, s{sA}, 1024")
    a("s_waitcnt vmcnt(0)")
srd(sT0, pX, 2097152)
a.vm(f"buffer_load_dwordx4 v[4:7], v28, {S(sT0,4)}, s{sE} offen", "x")
srd(sWS, pWS, WS_BYTES)
a(f"s_cmp_ge_u32 s{sWV}, 4\ns_cbranch_scc1 H_PRE")
q0 = list(a.vmq)

vQ, vIDX, vL16, vTMP, vGO, vOK, vOV = 48, 52, 53, 54, 55, 56, 57
KV = 64
def Kq(i): return KV + 12 * i
def kraw(i): return Kq(i // 4) + i % 4
def vraw(i): return Kq(3 + i // 4) + i % 4
if OPT["stamp"]: a(f"v_mov_b32 v{vSTA}, 0\nv_writelane_b32 v{vSTA}, s{sST}, 0")
a(f"""
v_mov_b32 v8, -1
v_mov_b32 v9, -1
v_mov_b32 v10, -1
v_mov_b32 v11, -1
v_lshrrev_b32 v1, 3, v29
v_lshlrev_b32 v1, 15, v1
v_and_b32 v3, 0x70, v28
s_cmp_eq_u32 s{sWV}, 0
s_cselect_b32 s{sB}, 0, {OOB}
v_add3_u32 v1, v1, v3, s{sB}
s_lshl_b32 s{sA}, s2, 7
s_add_u32 s{sA}, s{sA}, {KVG}
""")
a.vm(f"buffer_store_dwordx4 v[8:11], v1, {WSD}, s{sA} offen sc1", "clear")
srd(sT0, pBK, 2097152); srd(sT1, pBV, 2097152)
a(f"""
v_and_b32 v3, 0xff, v0
v_lshlrev_b32 v1, 2, v3
v_lshlrev_b32 v30, 4, v3
s_lshl_b32 s{sA}, s2, 13
s_sub_u32 s{sB}, s{sA}, 3072
s_cmp_eq_u32 s2, 0
s_cselect_b32 s{sB}, 0, s{sB}
s_cselect_b32 s{sC}, {OOB}, 0
v_add_u32 v3, s{sC}, v1
s_add_u32 s{sC}, s{sA}, 4096
""")
for i in range(3): a.vm(f"buffer_load_dword v{kraw(i)}, v3, {S(sT0,4)}, s{sB} offen offset:{1024*i}")
for i in range(8): a.vm(f"buffer_load_dword v{kraw(3+i)}, v1, {S(sT0,4)}, s{sA if i < 4 else sC} offen offset:{1024*(i%4)}")
for i in range(8): a.vm(f"buffer_load_dword v{vraw(i)}, v1, {S(sT1,4)}, s{sA if i < 4 else sC} offen offset:{1024*(i%4)}")
srd(sT0, pSH, 4096)
a.vm(f"buffer_load_dwordx4 {R(Kq(5),4)}, v30, {S(sT0,4)}, 0 offen", "kv")
a(f"""
v_mov_b64 v[12:13], 0
v_mov_b64 v[14:15], 0
ds_write_b128 v28, v[12:15]
v_mov_b32 v{vIDX}, 0xdddd
v_mov_b32 v{vL16}, v28
v_and_b32 v3, 31, v29
v_lshrrev_b32 v1, 5, v29
s_lshl_b32 s{sA}, s{sH}, 13
s_add_u32 s{sA}, s{sA}, {KVG}
v_lshlrev_b32 v{vOK}, 5, v3
v_lshl_add_u32 v{vOK}, v1, 4, v{vOK}
v_add_u32 v{vOK}, s{sA}, v{vOK}
s_add_u32 s{sA}, s{sA}, 32768
v_lshlrev_b32 v{vOV}, 3, v3
v_lshl_add_u32 v{vOV}, v1, 8, v{vOV}
v_add_u32 v{vOV}, s{sA}, v{vOV}
v_cmp_eq_u32 vcc, 16, v3
v_mov_b32 v16, 0x3f803f80
s_lshl_b64 s[{sEX1}:{sEX1+1}], 1, s{sH}
s_mov_b32 s{sEXV}, 0xffff
s_mov_b32 s{sEXV+1}, 0xffff
v_cndmask_b32 v16, 0, v16, vcc
v_mov_b32 v17, v16
""")
for i in range(16):
    for r in range(4, 12, 2): a(f"v_mov_b64 {R(Kq(i)+r,2)}, v[16:17]")
a(f"s_mul_i32 s{sD}, s{sH}, {XNS}\ns_add_u32 s{sD}, s{sD}, {XNB + 12*XNS}")
stamp(30, vSTA)
a.wvm("x")
stamp(31, vSTA)
qa = list(a.vmq)
a(f"s_call_b64 s[{sLK}:{sLK+1}], LN0\ns_branch A_MAIN")

vL, vH16, vZ, vONE, vQW, vQB, vRA, vRL, vRW, vCP, vOB, vPXR, vXTW, vXTR, vWO, vKR, vKG, vTG, vPXB = range(128, 147)
WO3, YR, XR, T = 148, 180, 188, 196
WKV = T + 28
a.label("H_PRE")
a.vmq = list(q0)
if OPT["stamp"]: a(f"v_mov_b32 v{vSTH}, 0\nv_writelane_b32 v{vSTH}, s{sST}, 0")
srd(sT0, pWK, 16384); srd(sT1, pWV, 16384)
a(f"""
s_mul_i32 s{sWP}, s{sH}, {WSZ}
s_add_u32 s{sWP}, s{sWP}, {W}
s_lshl_b32 s{sA}, s{sH}, 12
s_mov_b32 m0, s{sWP}
s_add_u32 s{sB}, s{sWP}, 4096
""")
for i in range(4): a.vm(f"buffer_load_dwordx4 v28, {S(sT0,4)}, s{sA} offen offset:{1024*i} lds")
a(f"s_mov_b32 m0, s{sB}\ns_nop 0")
for i in range(4): a.vm(f"buffer_load_dwordx4 v28, {S(sT1,4)}, s{sA} offen offset:{1024*i} lds", "wkv")
srd(sT1, pWQ, 524288)
vWQS, vTQ0, vTQ1 = WO3, WO3 + 1, WO3 + 2
a(f"""
v_lshrrev_b32 v1, 2, v29
v_lshlrev_b32 v1, 10, v1
v_and_b32 v3, 3, v29
v_lshrrev_b32 v8, 5, v29
v_lshlrev_b32 v8, 1, v8
v_xor_b32 v3, v3, v8
v_lshl_add_u32 v{vWQS}, v3, 4, v1
s_lshl_b32 s{sP1}, s{sJ}, 8
s_lshl_b32 s{sA}, s{sH}, 6
s_add_u32 s{sP1}, s{sP1}, s{sA}
""")
def wq_slot(p): return 8 + p if p < 16 else (p - 16 if p < 24 else p - 16)
def wq_dma(p0, p1):
    for p in range(p0, p1):
        a(f"s_add_u32 m0, s{sWP}, {1024*wq_slot(p)}")
        a(f"s_add_u32 s{sA}, s{sP1}, {16384*p}")
        a.vm(f"buffer_load_dwordx4 v{vWQS}, {S(sT1,4)}, s{sA} offen lds", f"wq{p}")
wq_dma(0, 16)
a(f"""
v_mov_b32 v{vL}, v29
v_mov_b32 v{vH16}, v28
v_mov_b32 v{vZ}, 0
v_mov_b32 v{vONE}, 1
v_and_b32 v1, 15, v29
v_lshrrev_b32 v3, 4, v29
v_and_b32 v8, 3, v29
v_lshrrev_b32 v9, 2, v1
v_and_b32 v10, 1, v3
v_lshrrev_b32 v11, 1, v3
s_lshl_b32 s{sA}, s{sH}, 7
s_add_u32 s{sA}, s{sA}, {QO}
v_lshlrev_b32 v12, 10, v9
v_lshl_add_u32 v12, v8, 4, v12
v_lshl_add_u32 v13, v11, 9, v12
v_lshl_add_u32 v13, v10, 3, v13
v_add_u32 v{vQW}, s{sA}, v13
v_lshl_add_u32 v13, v10, 9, v12
v_lshl_add_u32 v13, v11, 6, v13
v_add_u32 v{vOB}, {QO}, v13
v_mul_u32_u24 v13, {XNS}, v1
v_lshl_add_u32 v{vQB}, v3, 4, v13
s_lshl_b32 s{sA}, s{sH}, 9
s_add_u32 s{sA}, s{sA}, {PB}
v_lshl_add_u32 v{vRA}, v29, 3, s{sA}
v_lshrrev_b32 v13, 1, v29
v_lshlrev_b32 v14, 2, v13
v_add_u32 v{vRL}, {PB+2048}, v14
s_lshr_b32 s{sA}, s{sH}, 1
s_lshl_b32 s{sA}, s{sA}, 9
s_and_b32 s{sB}, s{sH}, 1
s_lshl_b32 s{sB}, s{sB}, 3
s_add_u32 s{sA}, s{sA}, s{sB}
s_add_u32 s{sA}, s{sA}, {QO}
v_and_b32 v15, 1, v29
v_lshlrev_b32 v14, 4, v13
v_lshl_add_u32 v14, v15, 2, v14
v_add_u32 v{vRW}, s{sA}, v14
v_lshlrev_b32 v{vCP}, 4, v8
s_lshl_b32 s{sA}, s{sH}, 6
v_lshlrev_b32 v14, 8, v13
v_lshl_add_u32 v14, v15, 5, v14
v_add_u32 v{vPXR}, s{sA}, v14
v_lshlrev_b32 v14, 6, v8
v_lshl_add_u32 v{vPXB}, v3, 4, v14
s_lshl_b32 s{sA}, s{sH}, 9
s_add_u32 s{sA}, s{sA}, {XT}
v_mul_u32_u24 v14, {XTS}, v8
v_lshl_add_u32 v14, v3, 4, v14
v_add_u32 v{vXTW}, s{sA}, v14
s_mul_i32 s{sA}, s{sH}, {XTS}
s_add_u32 s{sA}, s{sA}, {XT}
v_lshl_add_u32 v{vXTR}, v29, 5, s{sA}
v_add_u32 v{vWO}, s{sWP}, v28
v_lshlrev_b32 v14, 4, v8
v_lshl_add_u32 v14, v11, 2, v14
v_add_u32 v14, v14, v9
v_lshl_add_u32 v15, v11, 4, v1
v_add_u32 v15, 64, v15
v_cmp_eq_u32 vcc, 1, v10
v_lshlrev_b32 v13, 15, v3
v_lshl_add_u32 v{vKG}, v1, 3, v13
v_cndmask_b32 v14, v14, v15, vcc
v_lshlrev_b32 v14, 4, v14
v_add_u32 v{vKR}, {KVP}, v14
v_bfe_u32 v13, v29, 2, 2
v_lshlrev_b32 v14, 9, v3
v_lshl_add_u32 v14, v13, 6, v14
v_lshl_add_u32 v14, v8, 3, v14
v_lshl_add_u32 v14, v10, 5, v14
v_add_u32 v{vTQ0}, s{sWP}, v14
v_xor_b32 v{vTQ1}, 32, v{vTQ0}
v_lshlrev_b32 v14, 8, v3
v_lshl_add_u32 v14, v1, 3, v14
v_add_u32 v31, s{sWP}, v14
v_mul_u32_u24 v14, {XNS}, v8
v_lshl_add_u32 v14, v3, 4, v14
v_and_b32 v15, 1, v9
v_mul_u32_u24 v15, {XNB + 12*XNS - XN}, v15
s_lshl_b32 s{sA}, s{sH}, 8
s_add_u32 s{sA}, s{sA}, {XN}
v_add3_u32 v{T}, v14, v15, s{sA}
s_mov_b32 s{sHS}, 0
s_mov_b32 s{sSC}, 0x3eb8aa3b
s_mov_b32 s{sMSK}, 0xfff
s_mul_i32 s{sD}, s{sH}, {XNS}
s_add_u32 s{sD}, s{sD}, {XN}
""")
stamp(30, vSTH)
a.wvm("x")
stamp(31, vSTH)
qh = list(a.vmq)
a(f"s_call_b64 s[{sLK}:{sLK+1}], LN0\ns_branch H_MAIN")

a.label("LN0")
unpack(8, [4, 5, 6, 7])
normalize(8, 16, 24)
a(f"""
v_add_u32 v1, s{sD}, v28
s_add_u32 s{sE}, s{sE}, {XNG}
ds_write_b128 v1, v[24:27]
buffer_store_dwordx4 v[24:27], v28, {WSD}, s{sE} offen sc1
s_lshr_b32 s{sA}, s{sWV}, 2
s_xor_b32 s{sA}, s{sA}, 1
s_lshl_b32 s{sA}, s{sA}, 15
s_lshl_b32 s{sB}, s2, 7
s_lshl_b32 s{sC}, s{sH}, 2
s_add_u32 s{sB}, s{sB}, s{sC}
s_add_u32 s{sE}, s{sA}, s{sB}
s_add_u32 s{sE}, s{sE}, {FLX}
s_waitcnt lgkmcnt(0)
s_add_u32 s{sTAG}, s{sTAG}, 1
s_setpc_b64 s[{sLK}:{sLK+1}]
""")
a.label("A_MAIN")

a.vmq = qa + ["xn"]
stamp(32, vSTA)
vTGA = 59
a(f"""
v_mov_b32 v{vTGA}, s{sTAG}
s_lshl_b32 s{sA}, s2, 7
s_add_u32 s{sA}, s{sA}, {FLC}
s_cmp_eq_u32 s{sWV}, 0
s_cbranch_scc0 A_NOC
""")
q_ = list(a.vmq)
a.wvm("clear")
flag_store(vTGA, sA)
a.vmq = q_
a.label("A_NOC")
stamp(33, vSTA)
a("s_barrier")
stamp(1, vSTA)
a.wvm("kv")
a(f"v_mov_b32 v60, v30")
unpack(0, [kraw(i) for i in range(11)])
sk = Kq(5)
for i in range(4):
    if i % 2 == 0: a(f"v_lshlrev_b32 v{22+2*i}, 16, v{sk+i//2}\nv_lshlrev_b32 v{23+2*i}, 16, v{sk+2+i//2}")
    else: a(f"v_and_b32 v{22+2*i}, 0xffff0000, v{sk+i//2}\nv_and_b32 v{23+2*i}, 0xffff0000, v{sk+2+i//2}")
for t in range(8):
    d = R(30 + 2*t, 2)
    a(f"v_pk_mul_f32 {d}, {R(2*(t+3),2)}, v[22:23]")
    for i in range(1, 4): a(f"v_pk_fma_f32 {d}, {R(2*(t+3-i),2)}, {R(22+2*i,2)}, {d}")
    unpack(46, [vraw(t)])
    a(f"v_pk_mul_f32 {d}, {d}, v[46:47]")
for ch in range(2):
    for m in range(4): a(f"v_cvt_pk_bf16_f32 v{Kq(6+ch)+m}, v{30+2*(7-2*m)+ch}, v{30+2*(6-2*m)+ch}")
a(f"s_lshl_b32 s{sA}, s2, 13\ns_add_u32 s{sA}, s{sA}, {KVB}\ns_add_u32 s{sB}, s{sA}, 4096")
a.vm(f"buffer_store_dwordx4 {R(Kq(6),4)}, v60, {WSD}, s{sA} offen sc1")
a.vm(f"buffer_store_dwordx4 {R(Kq(7),4)}, v60, {WSD}, s{sB} offen sc1", "kvb")
a.wvm("xn")
flag_store(vTGA, sE)
stamp(2, vSTA)

def go_wait(val, sleep=0):
    L, ok = a.newlabel("gw"), a.newlabel("gwok")
    a.label(L)
    a(f"ds_read_b32 v{vGO}, v{vL16} offset:{CH}\ns_waitcnt lgkmcnt(0)\nv_readfirstlane_b32 s{sA}, v{vGO}\ns_cmp_ge_u32 s{sA}, {val}\ns_cbranch_scc1 {ok}")
    budget(L, sleep)
    a.label(ok)

go_wait("EV_KV1")
stamp(34, vSTA)
a(f"v_lshlrev_b32 v0, 3, v{vL16}\ns_lshl_b32 s{sB}, s{sH}, 13\ns_add_u32 s{sB}, s{sB}, {FLC}")
flag_wait([(1, 0, sB)])
a(f"s_lshl_b32 s{sB}, s2, 7\ns_lshl_b32 s{sC}, s{sH}, 2\ns_add_u32 s{sB}, s{sB}, s{sC}\ns_add_u32 s{sB}, s{sB}, {FLK}")
flag_store(vTGA, sB)
stamp(3, vSTA)
a(f"""
s_mov_b32 s{sLAY}, 0
s_mov_b32 s{sJOB}, 0
s_mov_b32 s{sTAB}, TAB0L
s_mov_b32 s{sTAB+1}, TAB0H
s_mov_b32 s{sNEED}, EV_Q0
s_setprio 1
""")
def exps(b, i0, i1):
    for i in range(i0, i1): a(f"v_exp_f32 v{b+i}, v{b+i}")
O = 32
def QK(t): a(f"v_mfma_f32_32x32x16_bf16 {R(16*(t&1),16)}, {R(Kq(t%16),4)}, {R(vQ,4)}, 0")
def PV(t, s_): a(f"v_smfmac_f32_32x32x32_bf16 {R(O,16)}, {R(Kq(t%16)+4+4*s_,4)}, {R(16*(t&1)+8*s_,8)}, v{vIDX}")
stubs = []
def verify(g, n):
    L = a.newlabel("ver"); Rt = a.newlabel("ret"); ok = a.newlabel("verok")
    a(f"s_waitcnt vmcnt({n})")
    a.label(L)
    vals = []
    for i in range(4*g, 4*g+4): vals += [Kq(i), Kq(i)+4, Kq(i)+6, Kq(i)+8, Kq(i)+10]
    a(f"v_max_u32 v{vGO}, v{vals[0]}, v{vals[1]}")
    for k in range(2, 20, 2): a(f"v_max3_u32 v{vGO}, v{vGO}, v{vals[k]}, v{vals[k+1]}")
    a(f"v_cmp_eq_u32 vcc, -1, v{vGO}\ns_cbranch_vccnz {Rt}")
    a.label(ok)
    def stub():
        a.label(Rt)
        a(f"s_sub_i32 s{sBUD}, s{sBUD}, 1\ns_cmp_gt_i32 s{sBUD}, 0\ns_cbranch_scc0 {ok}\ns_sleep 2\ns_call_b64 s[{sLK}:{sLK+1}], LG{g}\ns_waitcnt vmcnt(0)\ns_branch {L}")
    stubs.append(stub)
def job_setup():
    a(f"""
    s_and_b32 s{sA}, s{sJOB}, 3
    s_mul_i32 s{sPB}, s{sA}, {PBS}
    s_mul_i32 s{sA}, s{sH}, {PBW}
    s_add_u32 s{sPB}, s{sPB}, s{sA}
    s_add_u32 s{sPB}, s{sPB}, {PB}
    s_add_u32 s{sJOB}, s{sJOB}, 1
    s_and_b32 s{sQ}, s{sJOB}, 7
    s_lshl_b32 s{sQ}, s{sQ}, 10
    s_and_b32 s{sNEED}, s{sTAB}, 0xff
    s_lshr_b64 s[{sTAB}:{sTAB+1}], s[{sTAB}:{sTAB+1}], 8
    """)
def signal():
    a(f"s_mov_b64 exec, s[{sEX1}:{sEX1+1}]\nds_add_u32 v{vL16}, v{vIDX} offset:{CP}\ns_mov_b64 exec, -1")
def body(first):
    for t in range(16):
        b = 16 * (t & 1)
        if t == 0 and not first:
            exps(b, 0, 2); PV(15, 1); exps(b, 2, 5); QK(1)
            a(f"s_mov_b32 m0, s{sPB}")
            exps(b, 5, 12)
            a(f"v_add_u32 v{vTMP}, s{sPB}, v{vL16}")
            a(f"ds_write_b128 v{vTMP}, {R(O,4)}"); exps(b, 12, 13)
            a(f"ds_write_b128 v{vTMP}, {R(O+4,4)} offset:1024"); exps(b, 13, 14)
            a(f"ds_write_addtid_b32 v{O+8} offset:2048"); exps(b, 14, 15)
            for r in range(0, 8, 2): a(f"v_mov_b64 {R(O+r,2)}, 0")
            a(f"v_mov_b32 v{O+8}, 0")
            exps(b, 15, 16)
            continue
        if t == 1 and not first:
            exps(b, 0, 1); PV(0, 0); exps(b, 1, 4); PV(0, 1); exps(b, 4, 7); QK(2)
            signal()
            exps(b, 7, 11); PV(1, 0); exps(b, 11, 16)
            a("s_wakeup")
            continue
        exps(b, 0, 2)
        if t > 0: PV(t - 1, 1)
        exps(b, 2, 5)
        if first and t == 3:
            sk_ = a.newlabel("l2w")
            a(f"s_cmp_eq_u32 s{sLAY}, 0\ns_cbranch_scc1 {sk_}\ns_waitcnt vmcnt(0)")
            a.label(sk_)
            verify(1, 40)
        if first and t == 7:
            sk_ = a.newlabel("l2w")
            a(f"s_cmp_eq_u32 s{sLAY}, 0\ns_cbranch_scc1 {sk_}")
            stamp(9, vSTA)
            go_wait("EV_KVB")
            a(f"s_call_b64 s[{sLK}:{sLK+1}], LG2\ns_call_b64 s[{sLK}:{sLK+1}], LG3")
            a.label(sk_)
            verify(2, 20)
        if first and t == 11: verify(3, 0)
        if t == 15: a("s_waitcnt lgkmcnt(0)")
        QK(t + 1)
        if t == 12:
            job_setup()
            if OPT["stamp"]:
                a(f"s_memrealtime s[{sST}:{sST+1}]\ns_add_u32 m0, s{sJOB}, 39\ns_waitcnt lgkmcnt(0)\nv_writelane_b32 v{vSTA}, s{sST}, m0")
        if t == 13: a(f"ds_read_b32 v{vGO}, v{vL16} offset:{CH}")
        if t == 14:
            st, bk = a.newlabel("gst"), a.newlabel("gbk")
            a(f"s_waitcnt lgkmcnt(0)\nv_readfirstlane_b32 s{sA}, v{vGO}\nv_add_u32 v{vTMP}, s{sQ}, v{vL16}\ns_cmp_ge_u32 s{sA}, s{sNEED}\ns_cbranch_scc0 {st}")
            a.label(bk)
            a(f"ds_read_b128 {R(vQ,4)}, v{vTMP} offset:{QO}")
            def stub(st=st, bk=bk):
                a.label(st); go_wait(f"s{sNEED}"); a(f"s_branch {bk}")
            stubs.append(stub)
        exps(b, 5, 10); PV(t, 0); exps(b, 10, 16)

a.label("A_LAYER")
a(f"s_call_b64 s[{sLK}:{sLK+1}], LG0\ns_call_b64 s[{sLK}:{sLK+1}], LG1")
go_wait(f"s{sNEED}")
stamp(35, vSTA)
a(f"ds_read_b128 {R(vQ,4)}, v{vL16} offset:{QO}")
for r in range(0, 16, 2): a(f"v_mov_b64 {R(O+r,2)}, 0")
verify(0, 20)
a(f"s_waitcnt lgkmcnt(0)")
QK(0)
sk_ = a.newlabel("l1")
a(f"s_cmp_eq_u32 s{sLAY}, 0\ns_cbranch_scc0 {sk_}\ns_call_b64 s[{sLK}:{sLK+1}], LG2\ns_call_b64 s[{sLK}:{sLK+1}], LG3")
stamp(4, vSTA)
a.label(sk_)
a("s_nop 9")
body(True)
a(f"s_mov_b32 s{sCNT}, 7")
a(".p2align 3")
a.label("A_LOOP")
body(False)
a(f"s_sub_u32 s{sCNT}, s{sCNT}, 1\ns_cmp_lg_u32 s{sCNT}, 0\ns_cbranch_scc1 A_LOOP")
PV(15, 1)
a(f"""
s_mov_b32 m0, s{sPB}
v_add_u32 v{vTMP}, s{sPB}, v{vL16}
s_nop 9
ds_write_b128 v{vTMP}, {R(O,4)}
ds_write_b128 v{vTMP}, {R(O+4,4)} offset:1024
ds_write_addtid_b32 v{O+8} offset:2048
""")
signal()
a("s_wakeup")
a(f"s_cmp_eq_u32 s{sLAY}, 0\ns_cbranch_scc0 A_END")
stamp(8, vSTA)
a(f"""
s_mov_b32 s{sLAY}, 131072
s_mov_b32 s{sTAB}, TAB1L
s_mov_b32 s{sTAB+1}, TAB1H
s_mov_b32 s{sNEED}, EV_Q8
s_branch A_LAYER
""")
a.label("A_END")
def dump_stamps(v, l16):
    if OPT["stamp"]:
        a(f"s_lshl_b32 s{sA}, s2, 3\ns_add_u32 s{sA}, s{sA}, s{sWV}\ns_lshl_b32 s{sA}, s{sA}, 8\ns_add_u32 s{sA}, s{sA}, {STAMP}\nv_lshrrev_b32 v0, 2, v{l16}\nbuffer_store_dword v{v}, v0, {WSD}, s{sA} offen")
stamp(15, vSTA)
dump_stamps(vSTA, vL16)
a.label("EXIT")
a("s_endpgm")
for g in range(4):
    a.label(f"LG{g}")
    a(f"s_add_u32 s{sGR}, s{sLAY}, {(g>>1)*65536 + (g&1)*4096}")
    for i in range(4): a(f"buffer_load_dwordx4 {R(Kq(4*g+i),4)}, v{vOK}, {WSD}, s{sGR} offen offset:{1024*i} sc1")
    a(f"s_mov_b64 exec, s[{sEXV}:{sEXV+1}]")
    for i in range(4):
        for s_ in range(2):
            for u in range(2):
                a(f"buffer_load_dwordx2 {R(Kq(4*g+i)+4+4*s_+2*u,2)}, v{vOV}, {WSD}, s{sGR} offen offset:{1024*i+512*s_+128*u} sc1")
    a(f"s_mov_b64 exec, -1\ns_setpc_b64 s[{sLK}:{sLK+1}]")
for s_ in stubs: s_()

hs_count = [0]
EV = {}
def hsync_code(tmp):
    L, ok = a.newlabel("hs"), a.newlabel("hsok")
    a(f"""
    s_add_u32 s{sHS}, s{sHS}, 4
    s_mov_b64 exec, 1
    ds_add_rtn_u32 v{tmp}, v{vZ}, v{vONE} offset:{CH}
    s_mov_b64 exec, -1
    s_waitcnt lgkmcnt(0)
    v_readfirstlane_b32 s{sA}, v{tmp}
    s_add_u32 s{sA}, s{sA}, 1
    s_cmp_ge_u32 s{sA}, s{sHS}
    s_cbranch_scc1 {ok}
    """)
    a.label(L)
    a(f"ds_read_b32 v{tmp}, v{vZ} offset:{CH}\ns_waitcnt lgkmcnt(0)\nv_readfirstlane_b32 s{sA}, v{tmp}\ns_cmp_ge_u32 s{sA}, s{sHS}\ns_cbranch_scc1 {ok}")
    budget(L)
    a.label(ok)
    a.lgq.clear()
SUB_HS = {"HSYNC": 1, "KVPROJ": 1, "QPASS": 1, "RED": 0, "OPASS": 0, "XNSTAGE": 0, "PXWAIT": 0, "ROWOPS": 1, "ROWOPS_L1": 3}
def call(n, ev=None, label=None):
    a(f"s_call_b64 s[{sLK}:{sLK+1}], {label or n}")
    hs_count[0] += SUB_HS[n]
    a.lgq.clear()
    if ev: EV[ev] = 4 * hs_count[0]
def ret(): a(f"s_setpc_b64 s[{sLK}:{sLK+1}]")
HT = T + 27

a.label("H_MAIN")
a.vmq = qh + ["xn"]
a(f"v_mov_b32 v{vTG}, s{sTAG}\ns_setprio 2")
stamp(32, vSTH)
a.wvm("wkv")
stamp(33, vSTH)
for m in range(2):
    for s_ in range(4):
        for u in range(2):
            a.lg(f"ds_read_b64_tr_b16 {R(WKV+16*m+4*s_+2*u,2)}, v31 offset:{4096*m+1024*s_+128*u}")
        if m == 1 and s_ == 1: a.wlg()
a.wlg()
a("s_barrier")
stamp(1, vSTH)
wq_dma(16, 24)
a(f"s_lshl_b32 s{sKVO}, s2, 7\ns_add_u32 s{sKVO}, s{sKVO}, {KVG}\ns_mov_b64 s[{sEXK}:{sEXK+1}], -1")
call("KVPROJ", "KV1")
stamp(2, vSTH)
sk_ = a.newlabel("st")
a(f"s_cmp_eq_u32 s2, 0\ns_cbranch_scc0 {sk_}\ns_lshl_b32 s{sA}, s{sH}, 13\ns_add_u32 s{sA}, s{sA}, {WKVF}\ns_add_u32 s{sB}, s{sA}, 4096")
for i in range(8): a(f"buffer_store_dwordx4 {R(WKV+4*i,4)}, v{vH16}, {WSD}, s{sA if i < 4 else sB} offen offset:{1024*(i%4)} sc1")
a.label(sk_)
def wq_tr(s0, s1):
    for s_ in range(s0, s1):
        for hh in range(2):
            for u in range(2):
                a.lg(f"ds_read_b64_tr_b16 {R((hh*16+s_)*4+2*u,2)}, v{vTQ1 if hh else vTQ0} offset:{1024*wq_slot(2*s_)+256*u}")
        if (s_ - s0) % 3 == 2: a.wlg()
a.wvm("wq7"); wq_tr(0, 4); a.wlg()
wq_dma(24, 32)
a.wvm("xn"); flag_store(vTG, sE)
wq_tr(4, 8)
a.wvm("wq23"); wq_tr(8, 12)
a.wvm("wq31"); wq_tr(12, 16)
a.wlg()
stamp(3, vSTH)
vPB_, vPW_ = T + 40, T + 41
a(f"""
v_and_b32 v{T}, 12, v{vL}
v_mul_u32_u24 v{T}, {XNS}, v{T}
v_sub_u32 v{vPB_}, v{vQB}, v{T}
v_add_u32 v{vPB_}, {XN}, v{vPB_}
v_mov_b32 v{vPW_}, v{vQW}
""")
call("QPASS", "Q0")
stamp(4, vSTH)
KR = WO3
a(f"""
s_and_b32 s{sA}, s2, 7
s_lshl_b32 s{sA}, s{sA}, 5
s_lshr_b32 s{sB}, s2, 3
s_add_u32 s{sPOS}, s{sA}, s{sB}
s_lshl_b32 s{sA}, s{sPOS}, 1
s_lshr_b32 s{sB}, s{sH}, 1
s_add_u32 s{sA}, s{sA}, s{sB}
s_lshl_b32 s{sC}, s{sA}, 1
s_lshl_b32 s{sA}, s{sA}, 12
s_add_u32 s{sT0}, s{pSK}, s{sA}
s_addc_u32 s{sT0+1}, s{pSK+1}, 0
s_mov_b32 s{sT0+2}, 4096
s_mov_b32 s{sT0+3}, 0x20000
v_add_u32 v{KR+21}, -4, v{vH16}
""")
srd(sT1, pSD, 1024)
for i in range(4): a.vm(f"buffer_load_dwordx4 {R(KR+4*i,4)}, v{vH16}, {S(sT0,4)}, 0 offen offset:{1024*i}")
a.vm(f"buffer_load_dword v{KR+16}, v{KR+21}, {S(sT0,4)}, 0 offen")
for i in range(1, 4): a.vm(f"buffer_load_dword v{KR+16+i}, v{vH16}, {S(sT0,4)}, 0 offen offset:{1024*i-4}")
a.vm(f"buffer_load_ushort v{KR+20}, off, {S(sT1,4)}, s{sC}")
def xnstage(layer, half, dst):
    a(f"s_mov_b32 s{sP1}, {FLX + (layer*2+half)*0x8000}\ns_mov_b32 s{sP2}, {XNG + layer*0x200000 + half*4096}\ns_mov_b32 s{sP3}, {dst + (1-half)*4*XNS}")
    call("XNSTAGE"); a.vmq.clear()
xnstage(0, 0, XN); xnstage(0, 1, XNB)
sk_ = a.newlabel("st")
a(f"s_cmp_eq_u32 s2, 0\ns_cbranch_scc0 {sk_}\ns_lshl_b32 s{sA}, s{sH}, 2\ns_add_u32 s{sA}, s{sA}, {FLW}")
flag_store(vTG, sA); a.vmq.clear()
a.label(sk_)
call("HSYNC")
def qpass(half, src, ev):
    a(f"v_add_u32 v{vPB_}, {src}, v{vQB}\nv_add_u32 v{vPW_}, {4096*half}, v{vQW}")
    call("QPASS", ev)
qpass(0, XN, "Q1")
stamp(5, vSTH)
qpass(1, XNB, "Q4")
stamp(6, vSTH)

a(f"v_mov_b64 {R(T,2)}, 0\nv_mov_b64 {R(T+2,2)}, 0")
for i in range(4):
    a(f"ds_write_b128 v{vWO}, {R(KR+4*i,4)} offset:{C0+1024*i}")
    for m in range(4):
        a(f"v_alignbit_b32 v{T+4+4*i+m}, v{KR+4*i+m}, v{KR+4*i+m-1 if m else KR+16+i}, 16")
    a(f"ds_write_b128 v{vWO}, {R(T+4+4*i,4)} offset:{C1+1024*i}")
a(f"""
v_lshrrev_b32 v{T+20}, 5, v{vL}
v_lshl_add_u32 v{T+21}, v{T+20}, 10, v{vWO}
ds_write_b128 v{T+21}, {R(T,4)} offset:{UF}
v_lshrrev_b32 v{T+21}, 1, v{vL}
v_mul_u32_u24 v{T+21}, {2080-32}, v{T+21}
v_add_u32 v{T+21}, v{T+21}, v{vWO}
s_mov_b64 exec, 0x3ff
ds_write_b128 v{T+21}, {R(T,4)} offset:{YS}
s_mov_b64 exec, 1
ds_write_b128 v{vWO}, {R(T,4)}
ds_write_b128 v{vWO}, {R(T,4)} offset:{C1-16}
s_mov_b64 exec, -1
v_lshlrev_b32 v{T+22}, 9, v{vL}
v_lshlrev_b32 v{T+23}, 15, v{vL}
s_and_b32 s{sC}, s{sH}, 1
s_lshl_b32 s{sB}, s{sC}, 8
s_lshr_b32 s{sD}, s{sPOS}, 6
s_lshl_b32 s{sD}, s{sD}, 2
s_add_u32 s{sB}, s{sB}, s{sD}
s_add_u32 s{sP1}, s{sB}, {FLK}
s_add_u32 s{sP2}, s{sP1}, 128
""")
flag_wait([(T+24, T+22, sP1), (T+25, T+22, sP2)])
a(f"""
s_lshl_b32 s{sC}, s{sC}, 14
s_lshr_b32 s{sB}, s{sH}, 1
s_lshl_b32 s{sB}, s{sB}, 12
s_add_u32 s{sC}, s{sC}, s{sB}
s_lshl_b32 s{sB}, s{sPOS}, 4
s_add_u32 s{sC}, s{sC}, s{sB}
s_add_u32 s{sP1}, s{sC}, {KVB}
s_add_u32 s{sP2}, s{sP1}, 8192
""")
a.vm(f"buffer_load_dwordx4 {R(T+4,4)}, v{T+23}, {WSD}, s{sP1} offen sc1")
a.vm(f"buffer_load_dwordx4 {R(T+8,4)}, v{T+23}, {WSD}, s{sP2} offen sc1")
CA, CB, ACC = 212, 228, 148
vA0, vA1, vB0 = 252, 253, 254
AD = CA + 12
a(f"""
v_and_b32 v{T+12}, 1, v{vL}
v_xor_b32 v{T+13}, 1, v{T+12}
v_lshlrev_b32 v{T+14}, 4, v{T+13}
v_lshlrev_b32 v{T+14}, v{T+14}, v{KR+20}
v_lshrrev_b32 v{T+15}, 1, v{vL}
""")
for m in range(4):
    a(f"v_cmp_eq_u32 vcc, {3-m}, v{T+15}\ns_nop 1\nv_cndmask_b32 v{AD+m}, 0, v{T+14}, vcc")
a(f"""
v_mul_u32_u24 v{T+13}, {C1-C0}, v{T+13}
v_lshl_add_u32 v{T+13}, v{T+15}, 2, v{T+13}
s_add_u32 s{sA}, s{sWP}, {C0-12}
v_add_u32 v{vA0}, s{sA}, v{T+13}
v_add_u32 v{vA1}, 2048, v{vA0}
v_and_b32 v{T+13}, 31, v{vL}
v_sub_u32 v{T+13}, v{T+13}, v{T+20}
s_add_u32 s{sA}, s{sWP}, {UF+32}
v_lshl_add_u32 v{vB0}, v{T+13}, 4, s{sA}
""")
a.wvm()
a(f"ds_write_b128 v{vWO}, {R(T+4,4)} offset:{UF+512}\nds_write_b128 v{vWO}, {R(T+8,4)} offset:{UF+1536+512}")
a.wlg()
stamp(7, vSTH)
def mm32(d, A, B, c): a(f"v_mfma_f32_32x32x16_bf16 {R(d,16)}, {R(A,4)}, {R(B,4)}, {c}")
def rdA(E, hi):
    d = CA + 8 * (E & 1) + 4 * hi
    for u in range(2):
        a.lg(f"ds_read2_b32 {R(d+2*u,2)}, v{vA1 if hi else vA0} offset0:{(E&7)*32+2*u} offset1:{(E&7)*32+2*u+1}", ("A", E, hi))
def bslot(E, ff): return CB + 8 * ((2 * E + ff) % 3)
def rdB(E, ff):
    for T_ in range(2):
        a.lg(f"ds_read_b128 {R(bslot(E,ff)+4*T_,4)}, v{vB0} offset:{(30-2*E)*16+512*T_+1536*ff}", ("B", E, ff))
a(f"s_setprio {OPT['pc']}")
rdB(0, 0); rdB(0, 1); rdA(0, 0); rdA(0, 1)
a.wlg(("B", 0, 1))
for ff in range(2):
    for T_ in range(2): mm32(ACC + 32*ff + 16*T_, AD, bslot(0, ff) + 4*T_, 0)
for E in range(16):
    A0 = CA + 8 * (E & 1)
    for ff in range(2):
        if E == 7 and ff == 0: a(f"v_add_u32 v{vA0}, 1024, v{vA0}\nv_add_u32 v{vA1}, 1024, v{vA1}")
        if E < 15:
            if ff == 0: rdB(E + 1, 0)
            rdA(E + 1, ff)
        tags = [t_ for t_ in (("A", E, 1), ("B", E, ff)) if t_ in a.lgq]
        if tags: a.wlg(max(tags, key=lambda t_: a.lgq.index(t_)))
        b = bslot(E, ff); c0 = ACC + 32*ff
        mm32(c0 + 16, A0, b + 4, R(c0 + 16, 16)); mm32(c0, A0, b, R(c0, 16)); mm32(c0 + 16, A0 + 4, b, R(c0 + 16, 16))
        if E < 15 and ff == 0: rdB(E + 1, 1)
a("s_setprio 2")
stamp(8, vSTH)
a(f"""
v_and_b32 v{CA}, 31, v{vL}
v_lshrrev_b32 v{CA+1}, 5, v{vL}
v_lshlrev_b32 v{CA+2}, 5, v{CA}
v_lshl_add_u32 v{CA+2}, v{CA+1}, 4, v{CA+2}
v_add_u32 v{CA+2}, s{sWP}, v{CA+2}
s_and_b32 s{sA}, s{sH}, 1
s_lshl_b32 s{sA}, s{sA}, 1
v_add_u32 v{CA+1}, s{sA}, v{CA+1}
s_lshr_b32 s{sA}, s{sH}, 1
s_lshl_b32 s{sA}, s{sA}, 5
s_add_u32 s{sA}, s{sA}, {W+YS}
v_lshl_add_u32 v{CA}, v{CA}, 6, s{sA}
""")
for T_ in range(2):
    f0, f1 = ACC + 16*T_, ACC + 32 + 16*T_
    a(f"ds_write_b128 v{CA+2}, {R(f0,4)} offset:{YS+32+1024*T_}")
    for q in range(1, 4):
        for u in (0, 2): a(f"v_pk_add_f32 {R(f0+4*q+u,2)}, {R(f0+4*q+u,2)}, {R(f1+4*q-4+u,2)}")
        a(f"ds_write_b128 v{CA+2}, {R(f0+4*q,4)} offset:{YS+32+1024*T_+2080*q}")
    a(f"ds_write_b128 v{CA+2}, {R(f1+12,4)} offset:{YS+32+1024*T_+2080*4}")
c1, c2, c3, zz = CA + 3, CA + 4, CA + 5, CA + 6
a(f"""
v_mul_u32_u24 v{CA+7}, 2080, v{CA+1}
v_add_u32 v{CA+7}, v{CA+7}, v{CA}
v_add_u32 v{c1}, 32, v{CA+7}
v_mov_b32 v{zz}, {W+YS}
v_add_u32 v{c2}, {WSZ-2*2080+32}, v{CA+7}
v_add_u32 v{c3}, {WSZ+2*2080}, v{CA+7}
v_add_u32 v{CA+8}, {4*2080}, v{CA}
v_cmp_eq_u32 vcc, 3, v{CA+1}
s_nop 1
v_cndmask_b32 v{c3}, v{c3}, v{zz}, vcc
v_cmp_eq_u32 vcc, 1, v{CA+1}
s_nop 1
v_cndmask_b32 v{c2}, v{c2}, v{zz}, vcc
v_cmp_eq_u32 vcc, 0, v{CA+1}
s_nop 1
v_cndmask_b32 v{c2}, v{c2}, v{CA+8}, vcc
""")
call("HSYNC")
for ch in range(2):
    for k_, c_ in enumerate((c1, c2, c3)):
        for g in range(2):
            a.lg(f"ds_read_b128 {R(ACC+24*ch+8*k_+4*g,4)}, v{c_} offset:{2*WSZ*ch+16*g}", ch)
a(f"s_lshl_b32 s{sA}, s{sPOS}, 13\ns_lshl_b32 s{sB}, s{sH}, 10\ns_add_u32 s{sA}, s{sA}, s{sB}\ns_add_u32 s{sP1}, s{sA}, {YP}\ns_add_u32 s{sP2}, s{sP1}, 4096")
for ch in range(2):
    a.wlg(ch)
    b = ACC + 24*ch
    for k_ in (1, 2):
        for u in range(0, 8, 2): a(f"v_pk_add_f32 {R(b+u,2)}, {R(b+u,2)}, {R(b+8*k_+u,2)}")
for e_ in range(8):
    r_ = 4*(e_ & 1) + (e_ >> 1)
    a(f"v_cvt_pk_bf16_f32 v{T+e_}, v{ACC+r_}, v{ACC+24+r_}")
a.vm(f"buffer_store_dwordx4 {R(T,4)}, v{vH16}, {WSD}, s{sP1} offen sc1")
a.vm(f"buffer_store_dwordx4 {R(T+4,4)}, v{vH16}, {WSD}, s{sP2} offen sc1", "y")
call("HSYNC")
stamp(9, vSTH)

srd(sT1, pWO, 524288)
vS0, vS1, vTA = T + 8, T + 9, T + 10
a(f"""
v_lshrrev_b32 v{T+20}, 4, v{vL}
v_bfe_u32 v{T+21}, v{vL}, 1, 3
v_lshlrev_b32 v{T+22}, 1, v{T+20}
v_xor_b32 v{T+21}, v{T+21}, v{T+22}
v_lshlrev_b32 v{T+22}, 10, v{T+20}
v_lshl_add_u32 v{T+22}, v{T+21}, 5, v{T+22}
v_and_b32 v{T+21}, 1, v{vL}
v_lshl_add_u32 v{vS0}, v{T+21}, 4, v{T+22}
v_xor_b32 v{vS1}, 32, v{vS0}
s_lshl_b32 s{sP3}, s{sJ}, 17
s_lshl_b32 s{sA}, s{sH}, 8
s_add_u32 s{sP3}, s{sP3}, s{sA}
""")
def wo_dma(s_, area):
    for bi in range(8):
        a(f"s_add_u32 m0, s{sWP}, {8192*area+1024*bi}\ns_add_u32 s{sA}, s{sP3}, {(32*s_+4*bi)*1024}")
        a.vm(f"buffer_load_dwordx4 v{vS1 if (bi>>1)&1 else vS0}, {S(sT1,4)}, s{sA} offen lds", f"wo{s_}")
wo_dma(3, 0); wo_dma(1, 1); wo_dma(2, 2)
a(f"""
v_bfe_u32 v{T+21}, v{vL}, 2, 2
v_and_b32 v{T+22}, 1, v{T+20}
v_lshl_add_u32 v{T+22}, v{T+21}, 1, v{T+22}
v_lshlrev_b32 v{T+23}, 11, v{T+20}
v_lshl_add_u32 v{T+23}, v{T+21}, 8, v{T+23}
v_lshl_add_u32 v{T+23}, v{T+22}, 5, v{T+23}
v_and_b32 v{T+21}, 3, v{vL}
v_lshl_add_u32 v{T+23}, v{T+21}, 3, v{T+23}
v_add_u32 v{vTA}, s{sWP}, v{T+23}
""")
for mt in range(1, 8): a(f"v_xor_b32 v{vTA+mt}, {32*mt}, v{vTA}")
a(f"s_lshl_b32 s{sA}, s{sPOS}, 7\ns_lshl_b32 s{sB}, s{sH}, 2\ns_add_u32 s{sA}, s{sA}, s{sB}\ns_add_u32 s{sB}, s{sA}, {FLY}")
a.wvm("y"); flag_store(vTG, sB)
def wo_tr(area, dst):
    for mt in range(8):
        for u in range(2): a.lg(f"ds_read_b64_tr_b16 {R(dst+4*mt+2*u,2)}, v{vTA+mt} offset:{8192*area+1024*u}")
        if mt == 3: a.wlg()
    a.wlg()
def wo_wr(area, src):
    for mt in range(8): a.lg(f"ds_write_b128 v{vWO}, {R(src+4*mt,4)} offset:{8192*area+1024*mt}")
    a.wlg()
a.wvm("wo3"); wo_tr(0, WO3)
wo_dma(0, 0)
srd(sT0, pX, 2097152)
a(f"s_lshl_b32 s{sA}, s2, 3\ns_add_u32 s{sA}, s{sA}, s{sH}\ns_lshl_b32 s{sA}, s{sA}, 10\ns_add_u32 s{sB}, s{sA}, 4096")
a.vm(f"buffer_load_dwordx4 {R(XR,4)}, v{vH16}, {S(sT0,4)}, s{sA} offen")
a.vm(f"buffer_load_dwordx4 {R(XR+4,4)}, v{vH16}, {S(sT0,4)}, s{sB} offen")
for s_ in (1, 2, 0):
    a.wvm(f"wo{s_}"); wo_tr(s_, WKV); wo_wr(s_, WKV)
srd(sT0, pOUT, 2097152)
stamp(10, vSTH)

a(f"s_mov_b32 s{sCPN}, 0")
def red(n):
    for _ in range(n): call("RED")
vOBp, vXTp, vPXp = T + 56, T + 57, T + 58
def opass(rnd, partner, own):
    half = rnd & 1
    m = 0xf000f000 if half else 0x000f000f
    a(f"s_mov_b32 s{sOWN}, {m:#x}\ns_mov_b32 s{sOWN+1}, {m:#x}\nv_add_u32 v{vOBp}, {4096*half}, v{vOB}\nv_mov_b32 v{T+8}, {ZERO}\nv_mov_b32 v{T+9}, {OOB}\nv_mov_b32 v{vXTp}, {LOOB}")
    if not own: a(f"v_cndmask_b32 v{vOBp}, v{vOBp}, v{T+8}, s[{sOWN}:{sOWN+1}]")
    else: a(f"v_cndmask_b32 v{vXTp}, v{vXTp}, v{vXTW}, s[{sOWN}:{sOWN+1}]")
    if not partner: a(f"v_cndmask_b32 v{vOBp}, v{T+8}, v{vOBp}, s[{sOWN}:{sOWN+1}]")
    else:
        a(f"""
        v_bfe_u32 v{T+10}, v{vL}, 2, 2
        s_add_u32 s{sA}, s{sJ}, {half}
        v_add_u32 v{T+10}, s{sA}, v{T+10}
        v_and_b32 v{T+10}, 3, v{T+10}
        v_lshl_add_u32 v{T+10}, v{T+10}, 15, v{vPXB}
        v_cndmask_b32 v{vPXp}, v{T+10}, v{T+9}, s[{sOWN}:{sOWN+1}]
        s_and_b32 s{sA}, s2, 0xfc
        s_lshl_b32 s{sA}, s{sA}, 15
        s_lshl_b32 s{sB}, s{sJ}, 13
        s_add_u32 s{sA}, s{sA}, s{sB}
        s_lshl_b32 s{sB}, s{sH}, 11
        s_add_u32 s{sA}, s{sA}, s{sB}
        s_add_u32 s{sPXW}, s{sA}, {PX + rnd*0x800000}
        """)
    a(f"s_mov_b32 s{sP1}, {int(partner)}")
def pxwait(rnd):
    a(f"s_lshl_b32 s{sPXR}, s2, 15\ns_add_u32 s{sPXR}, s{sPXR}, {PX + rnd*0x800000}")
    call("PXWAIT")
def rowops(rnd, ev=None):
    a(f"s_mov_b32 s{sHALF}, {rnd & 1}\ns_mov_b32 s{sLYR}, {rnd >> 1}")
    call("ROWOPS" if rnd >> 1 else "ROWOPS_L1", ev, "ROWOPS")

red(4); opass(0, True, True); call("HSYNC", "R3"); stamp(11, vSTH); call("OPASS")
stamp(12, vSTH)
a(f"""
v_lshlrev_b32 v{T+8}, 9, v{vL}
s_lshr_b32 s{sA}, s{sPOS}, 6
s_lshl_b32 s{sA}, s{sA}, 2
s_add_u32 s{sP1}, s{sA}, {FLY}
s_add_u32 s{sP2}, s{sP1}, 128
s_add_u32 s{sP3}, s{sP1}, 256
s_add_u32 s{sB}, s{sP1}, 384
s_lshl_b32 s{sC}, s{sH}, 2
s_add_u32 s{sC}, s{sC}, {FLW}
""")
flag_wait([(T+9, T+8, sP1), (T+10, T+8, sP2), (T+11, T+8, sP3), (T+12, T+8, sB), (T+13, vZ, sC)])
a(f"""
v_lshlrev_b32 v{T+8}, 15, v{vL}
s_lshl_b32 s{sA}, s{sPOS}, 4
s_lshr_b32 s{sB}, s{sH}, 1
s_lshl_b32 s{sB}, s{sB}, 12
s_add_u32 s{sA}, s{sA}, s{sB}
s_and_b32 s{sB}, s{sH}, 1
s_lshl_b32 s{sB}, s{sB}, 3
s_add_u32 s{sA}, s{sA}, s{sB}
s_add_u32 s{sA}, s{sA}, {YP}
""")
for u in range(4):
    a(f"buffer_load_dwordx2 {R(YR+2*u,2)}, v{T+8}, {WSD}, s{sA} offen sc1")
    if u < 3: a(f"s_add_u32 s{sA}, s{sA}, 8192")
stamp(13, vSTH)
pxwait(0); stamp(14, vSTH); rowops(0); stamp(15, vSTH)
red(3); opass(1, True, False); call("HSYNC", "R6"); stamp(16, vSTH); call("OPASS")
xnstage(1, 0, XN); call("HSYNC"); qpass(0, XN, "Q8"); stamp(17, vSTH)
pxwait(1); stamp(18, vSTH); opass(1, False, True); red(1); call("HSYNC"); stamp(19, vSTH); call("OPASS"); stamp(20, vSTH)
rowops(1); stamp(21, vSTH)
call("HSYNC", "KVB"); xnstage(1, 1, XN); call("HSYNC"); qpass(1, XN, "Q12"); stamp(22, vSTH)
red(4); opass(2, True, True); call("HSYNC", "R11"); call("OPASS"); pxwait(2); rowops(2); stamp(23, vSTH)
red(3); opass(3, True, False); call("HSYNC"); stamp(24, vSTH); call("OPASS")
pxwait(3); stamp(25, vSTH); opass(3, False, True); red(1); call("HSYNC"); stamp(26, vSTH); call("OPASS"); stamp(27, vSTH)
rowops(3)
stamp(28, vSTH)
dump_stamps(vSTH, vH16)
a(f"s_or_b32 s{sA}, s2, s{sH}\ns_cmp_eq_u32 s{sA}, 0\ns_cbranch_scc0 H_END")
flag_store(vTG, sA)
a.label("H_END")
if OPT["probe"] >= 5:
    if OPT["probe"] == 6: a(f"s_cmp_eq_u32 s2, 0\ns_cbranch_scc0 PR_E")
    a(f"PR_L:\ns_memrealtime s[90:91]\ns_waitcnt lgkmcnt(0)\ns_sub_u32 s90, s90, s{sST}\ns_cmp_lt_u32 s90, 10000\ns_cbranch_scc1 PR_L\nPR_E:")
a("s_endpgm")

a.label("HSYNC"); hsync_code(HT); ret()

def mm16(d, A, B, c): a(f"v_mfma_f32_16x16x32_bf16 {R(d,4)}, {R(A,4)}, {R(B,4)}, {c}")

a.label("RED")
r0 = T + 8
a(f"""
s_and_b32 s{sRPB}, s{sCPN}, 3
s_mul_i32 s{sRPB}, s{sRPB}, {PBS}
s_and_b32 s{sRSL}, s{sCPN}, 7
s_lshl_b32 s{sRSL}, s{sRSL}, 10
s_add_u32 s{sCPN}, s{sCPN}, 1
s_mul_i32 s{sCPT}, s{sCPN}, 0xdddd
v_add_u32 v{r0+12}, s{sRPB}, v{vRA}
v_add_u32 v{r0+13}, s{sRPB}, v{vRL}
v_add_u32 v{r0+14}, s{sRSL}, v{vRW}
""")
a.label("RED_W")
a(f"ds_read_b32 v{r0}, v{vCP} offset:{CP}\ns_waitcnt lgkmcnt(0)\nv_cmp_gt_u32 vcc, s{sCPT}, v{r0}\ns_cbranch_vccz RED_GO")
budget("RED_W", 4)
a.label("RED_GO")
a(f"ds_read2st64_b32 {R(r0+8,2)}, v{r0+13} offset0:0 offset1:9\nds_read2st64_b32 {R(r0+10,2)}, v{r0+13} offset0:18 offset1:27")
for w in range(4): a(f"ds_read_b64 {R(r0+2*w,2)}, v{r0+12} offset:{PBW*w}")
a(f"""
s_waitcnt lgkmcnt(4)
v_pk_add_f32 {R(r0+8,2)}, {R(r0+8,2)}, {R(r0+10,2)}
v_add_f32 v{r0+8}, v{r0+8}, v{r0+9}
v_rcp_f32 v{r0+10}, v{r0+8}
s_waitcnt lgkmcnt(0)
v_pk_add_f32 {R(r0,2)}, {R(r0,2)}, {R(r0+2,2)}
v_pk_add_f32 {R(r0+4,2)}, {R(r0+4,2)}, {R(r0+6,2)}
v_pk_add_f32 {R(r0,2)}, {R(r0,2)}, {R(r0+4,2)}
v_pk_mul_f32 {R(r0,2)}, {R(r0,2)}, {R(r0+10,2)} op_sel_hi:[1,0]
v_cvt_pk_bf16_f32 v{r0}, v{r0}, v{r0+1}
ds_write_b32 v{r0+14}, v{r0}
""")
ret()

a.label("QPASS")
a(f"s_setprio {OPT['pq']}")
qa_ = T + 32
for s_ in range(8): a.lg(f"ds_read_b128 {R(T+4*s_,4)}, v{vPB_} offset:{64*s_}", s_)
for s_ in range(16):
    a.wlg(s_)
    for hh in range(2): mm16(qa_ + 4*hh, (hh*16 + s_)*4, T + 4*(s_ % 8), R(qa_ + 4*hh, 4) if s_ else 0)
    if s_ < 8: a.lg(f"ds_read_b128 {R(T+4*s_,4)}, v{vPB_} offset:{64*(s_+8)}", s_ + 8)
a("s_setprio 2\ns_nop 5")
for i in range(0, 8, 2): a(f"v_pk_mul_f32 {R(qa_+i,2)}, {R(qa_+i,2)}, {S(sSC,2)} op_sel_hi:[1,0]")
pack(T, qa_)
a(f"ds_write_b64 v{vPW_}, {R(T,2)}\nds_write_b64 v{vPW_}, {R(T+2,2)} offset:64")
hsync_code(HT)
ret()

a.label("XNSTAGE")
a(f"""
v_and_b32 v{T+8}, 3, v{vL}
v_max_u32 v{T+8}, 1, v{T+8}
v_add_u32 v{T+8}, s{sJ}, v{T+8}
v_and_b32 v{T+8}, 3, v{T+8}
v_lshlrev_b32 v{T+8}, 7, v{T+8}
s_and_b32 s{sB}, s2, 0xfc
s_lshl_b32 s{sA}, s{sB}, 7
s_add_u32 s{sP1}, s{sP1}, s{sA}
s_lshl_b32 s{sA}, s{sH}, 2
s_add_u32 s{sP1}, s{sP1}, s{sA}
s_lshl_b32 s{sB}, s{sB}, 13
s_add_u32 s{sP2}, s{sP2}, s{sB}
s_lshl_b32 s{sA}, s{sH}, 10
s_add_u32 s{sP2}, s{sP2}, s{sA}
s_mul_i32 s{sA}, s{sH}, {XNS}
s_add_u32 s{sP3}, s{sP3}, s{sA}
""")
flag_wait([(T+9, T+8, sP1)])
for ip in range(1, 4):
    a(f"s_add_u32 s{sA}, s{sJ}, {ip}\ns_and_b32 s{sA}, s{sA}, 3\ns_lshl_b32 s{sA}, s{sA}, 13\ns_add_u32 s{sA}, s{sA}, s{sP2}")
    a.vm(f"buffer_load_dwordx4 {R(T+8+4*ip,4)}, v{vH16}, {WSD}, s{sA} offen sc1", ip)
a(f"v_add_u32 v{T+8}, s{sP3}, v{vH16}")
for ip in range(1, 4):
    a.wvm(ip); a(f"ds_write_b128 v{T+8}, {R(T+8+4*ip,4)} offset:{4*XNS*(ip-1)}")
ret()

a.label("OPASS")
a(f"s_setprio {OPT['po']}")
oB, oA, oC = T + 8, T + 24, T + 48
a(f"s_cmp_eq_u32 s{sP1}, 0")
def rdoA(mt):
    for s_ in range(3): a.lg(f"ds_read_b128 {R(oA+12*(mt&1)+4*s_,4)}, v{vWO} offset:{8192*s_+1024*mt}", mt)
for s_ in (3, 0, 1, 2): a.lg(f"ds_read_b128 {R(oB+4*s_,4)}, v{vOBp} offset:{128*s_}")
rdoA(0); rdoA(1)
def oepi(mt):
    c_ = oC + 4*(mt & 1); sk = a.newlabel("oe")
    a.lg(f"ds_write_b128 v{vXTp}, {R(c_,4)} offset:{64*mt}")
    a(f"s_cbranch_scc1 {sk}\nv_bfi_b32 v{c_}, s{sMSK}, v{vTG}, v{c_}\nbuffer_store_dwordx4 {R(c_,4)}, v{vPXp}, {WSD}, s{sPXW} offen offset:{256*mt} sc1")
    a.label(sk)
for mt in range(8):
    c_ = oC + 4*(mt & 1)
    a.wlg(mt)
    mm16(c_, WO3 + 4*mt, oB + 12, 0)
    for s_ in range(3): mm16(c_, oA + 12*(mt & 1) + 4*s_, oB + 4*s_, R(c_, 4))
    if mt < 6: rdoA(mt + 2)
    else: a("s_nop 2")
    if mt: oepi(mt - 1)
a("s_setprio 2\ns_nop 4")
oepi(7)
ret()

a.label("PXWAIT")
for ip in range(1, 4):
    a(f"s_add_u32 s{sA}, s{sJ}, {ip}\ns_and_b32 s{sA}, s{sA}, 3\ns_lshl_b32 s{sA}, s{sA}, 13\ns_add_u32 s{sP1+ip-1}, s{sA}, s{sPXR}")
a.label("PX_W")
for ip in range(3):
    for u in range(2): a(f"buffer_load_dwordx4 {R(T+8+8*ip+4*u,4)}, v{vPXR}, {WSD}, s{sP1+ip} offen offset:{16*u} sc1")
a(f"s_waitcnt vmcnt(0)\nv_xor_b32 v{T}, v{vTG}, v{T+8}")
for k_ in range(1, 6): a(f"v_bitop3_b32 v{T}, v{T+8+4*k_}, v{vTG}, v{T} bitop3:0xbe")
a(f"v_and_b32 v{T}, s{sMSK}, v{T}\nv_cmp_ne_u32 vcc, 0, v{T}\ns_cbranch_vccz PX_GO")
budget("PX_W", 4)
a.label("PX_GO")
unpack(T, [XR, XR+1, XR+2, XR+3])
for ip in range(3):
    for u in range(0, 8, 2): a(f"v_pk_add_f32 {R(T+u,2)}, {R(T+u,2)}, {R(T+8+8*ip+u,2)}")
ret()

a.label("ROWOPS")
a(f"s_cmp_eq_u32 s{sLYR}, 0\ns_cbranch_scc0 RO_1\ns_lshl_b32 s{sA}, s{sH}, 13\ns_add_u32 s{sA}, s{sA}, {WKVF}\ns_add_u32 s{sB}, s{sA}, 4096")
for i in range(8): a(f"buffer_load_dwordx4 {R(WKV+4*i,4)}, v{vH16}, {WSD}, s{sA if i < 4 else sB} offen offset:{1024*(i%4)} sc1")
a.label("RO_1")
hsync_code(HT)
a(f"ds_read_b128 {R(T+8,4)}, v{vXTR}\nds_read_b128 {R(T+12,4)}, v{vXTR} offset:16")
a(f"""
s_lshl_b32 s{sE}, s2, 1
s_add_u32 s{sE}, s{sE}, s{sHALF}
s_lshl_b32 s{sE}, s{sE}, 2
s_add_u32 s{sE}, s{sE}, s{sH}
s_lshl_b32 s{sE}, s{sE}, 10
s_waitcnt lgkmcnt(0)
""")
for u in range(0, 8, 2): a(f"v_pk_add_f32 {R(T+u,2)}, {R(T+u,2)}, {R(T+8+u,2)}")
stats(T, T + 16)
center(T + 8, T)
for u in range(4):
    unpack(T + 18, [YR + 2*u])
    a(f"v_pk_mul_f32 {R(T+8+2*u,2)}, {R(T+8+2*u,2)}, {R(T+18,2)}")
for u in range(0, 8, 2): a(f"v_pk_fma_f32 {R(T+u,2)}, {R(T+8+u,2)}, {R(T+16,2)}, {R(T+u,2)} op_sel_hi:[1,0,1]")
pack(XR, T)
a(f"s_cmp_eq_u32 s{sLYR}, 0\ns_cbranch_scc1 RO_2")
a(f"buffer_store_dwordx4 {R(XR,4)}, v{vH16}, {S(sT0,4)}, s{sE} offen\ns_nop 1\ns_branch RO_3")
a.label("RO_2")
normalize(T, T + 16, T + 8)
a(f"""
s_mul_i32 s{sA}, s{sHALF}, {12*XNS}
s_mul_i32 s{sB}, s{sH}, {XNS}
s_add_u32 s{sB}, s{sB}, s{sA}
v_add_u32 v{T+12}, s{sB}, v{vH16}
ds_write_b128 v{T+12}, {R(T+8,4)} offset:{XN}
s_add_u32 s{sE}, s{sE}, {XNG + 0x200000}
buffer_store_dwordx4 {R(T+8,4)}, v{vH16}, {WSD}, s{sE} offen sc1
s_lshl_b32 s{sB}, s{sH}, 8
s_add_u32 s{sA}, s{sA}, s{sB}
s_add_u32 s{sA}, s{sA}, {XN}
v_and_b32 v{T}, 12, v{vL}
v_mul_u32_u24 v{T}, {XNS}, v{T}
v_sub_u32 v{T}, v{vQB}, v{T}
v_add_u32 v{T}, s{sA}, v{T}
s_lshl_b32 s{sKVO}, s2, 7
s_lshl_b32 s{sB}, s{sHALF}, 16
s_add_u32 s{sKVO}, s{sKVO}, s{sB}
s_add_u32 s{sKVO}, s{sKVO}, {KVG + 131072}
s_mov_b32 s{sEXK+1}, 0
""")
hsync_code(HT)
a(f"s_mov_b64 s[{sLK2}:{sLK2+1}], s[{sLK}:{sLK+1}]\ns_waitcnt vmcnt(1)\ns_call_b64 s[{sLK}:{sLK+1}], KVPROJ\ns_mov_b64 s[{sLK}:{sLK+1}], s[{sLK2}:{sLK2+1}]")
a(f"""
s_lshl_b32 s{sA}, s{sHALF}, 15
s_lshl_b32 s{sB}, s2, 7
s_add_u32 s{sA}, s{sA}, s{sB}
s_lshl_b32 s{sB}, s{sH}, 2
s_add_u32 s{sA}, s{sA}, s{sB}
s_add_u32 s{sA}, s{sA}, {FLX + 2*0x8000}
s_waitcnt vmcnt(0)
""")
flag_store(vTG, sA)
a.label("RO_3")
for u in range(4): a(f"v_swap_b32 v{YR+2*u}, v{YR+2*u+1}\nv_swap_b32 v{XR+u}, v{XR+4+u}")
ret()

a.label("KVPROJ")
for s_ in range(4): a.lg(f"ds_read_b128 {R(T+4+4*s_,4)}, v{T} offset:{64*s_}", s_)
a(f"s_lshl_b32 s{sA}, s{sH}, 11\ns_add_u32 s{sA}, s{sA}, {KVP}\nv_add_u32 v{T+1}, s{sA}, v{vH16}")
for s_ in range(4):
    a.wlg(s_)
    mm16(T + 20, WKV + 4*s_, T + 4 + 4*s_, R(T + 20, 4) if s_ else 0)
    mm16(T + 24, T + 4 + 4*s_, WKV + 16 + 4*s_, R(T + 24, 4) if s_ else 0)
a(f"s_nop 6\nds_write_b128 v{T+1}, {R(T+20,4)}\nds_write_b128 v{T+1}, {R(T+24,4)} offset:1024")
hsync_code(T)
a(f"s_cmp_eq_u32 s{sH}, 0\ns_cbranch_scc0 KV_END")
for w in range(4): a(f"ds_read_b128 {R(T+4+4*w,4)}, v{vKR} offset:{2048*w}")
a(f"""
s_waitcnt lgkmcnt(2)
v_pk_add_f32 {R(T+4,2)}, {R(T+4,2)}, {R(T+8,2)}
v_pk_add_f32 {R(T+6,2)}, {R(T+6,2)}, {R(T+10,2)}
s_waitcnt lgkmcnt(0)
v_pk_add_f32 {R(T+12,2)}, {R(T+12,2)}, {R(T+16,2)}
v_pk_add_f32 {R(T+14,2)}, {R(T+14,2)}, {R(T+18,2)}
v_pk_add_f32 {R(T+4,2)}, {R(T+4,2)}, {R(T+12,2)}
v_pk_add_f32 {R(T+6,2)}, {R(T+6,2)}, {R(T+14,2)}
v_cvt_pk_bf16_f32 v{T+4}, v{T+4}, v{T+5}
v_cvt_pk_bf16_f32 v{T+5}, v{T+6}, v{T+7}
v_min_u32 v{T+4}, -2, v{T+4}
s_mov_b64 exec, s[{sEXK}:{sEXK+1}]
buffer_store_dwordx2 {R(T+4,2)}, v{vKG}, {WSD}, s{sKVO} offen sc1
s_mov_b64 exec, -1
""")
a.label("KV_END")
ret()
a.label("CODE_END")

need0 = [EV["Q1"], EV["Q1"], EV["Q4"], EV["Q4"], EV["R3"], EV["R3"], EV["R3"], EV["R3"]]
need1 = [EV["R6"], EV["R6"], EV["R6"], EV["Q12"], EV["R11"], EV["R11"], EV["R11"], EV["R11"]]
def tab(l):
    v = sum(x << (8*i) for i, x in enumerate(l)); assert max(l) < 256
    return v & 0xffffffff, v >> 32
sets = {"EV_" + k: v for k, v in EV.items()}
sets["TAB0L"], sets["TAB0H"] = tab(need0); sets["TAB1L"], sets["TAB1H"] = tab(need1)
errs = check(a.lines)
for e_ in errs: print(e_, file=sys.stderr)
ref = open(f"cdna_kernels/{NAME}.s.ref").read()
hdr = ref[:ref.index("; Override launch geometry")]
out = hdr + f"; @launch grid=(256,1,1) block=(512,1,1) lds={LDS_BYTES}\n"
out += '.amdgcn_target "amdgcn-amd-amdhsa--gfx950"\n'
out += "".join(f".set {k}, {v:#x}\n" for k, v in sets.items())
out += f".text\n.globl {NAME}_kernel\n.p2align 8\n.type {NAME}_kernel,@function\n{NAME}_kernel:\n"
out += a.text()
out += f""".section .rodata,"a"
.p2align 6
.amdhsa_kernel {NAME}_kernel
  .amdhsa_next_free_vgpr 256
  .amdhsa_next_free_sgpr 102
  .amdhsa_accum_offset 256
  .amdhsa_group_segment_fixed_size 0
  .amdhsa_kernarg_size 112
  .amdhsa_user_sgpr_count 2
  .amdhsa_user_sgpr_kernarg_segment_ptr 1
  .amdhsa_system_sgpr_workgroup_id_x 1
  .amdhsa_float_denorm_mode_32 3
.end_amdhsa_kernel
"""
open(sys.argv[1], "w").write(out)
print("events", EV, "hazards", len(errs), file=sys.stderr)
```
